```python
import torch

def _softmax(x, axis=-1):
    return torch.softmax(x, dim=axis)
def _gelu(x):
    return torch.nn.functional.gelu(x, approximate="tanh")
def _silu(x):
    return torch.nn.functional.silu(x)
def _sigmoid(x):
    return torch.sigmoid(x)
def _layernorm(x, axis=-1, eps=1e-5):
    m = x.mean(dim=axis, keepdim=True)
    v = x.var(dim=axis, keepdim=True, unbiased=False)
    return (x - m) / torch.sqrt(v + eps)
def _scatter_add(tgt, idx, src, axis=0):
    return tgt.clone().index_add_(axis, idx, src)
def _segment_sum(src, seg, n):
    out = torch.zeros((n,) + src.shape[1:], dtype=src.dtype)
    return out.index_add_(0, seg, src)
def _pad(x, pw):
    flat = tuple(v for pair in reversed(pw) for v in pair)
    return torch.nn.functional.pad(x, flat)

kernel_name = 'standalone__mha_block_cached__near_ridge'

def setup_inputs():

    _w = (lambda a: (lambda t: t.to(torch.bfloat16) if t.is_floating_point() else t)(torch.as_tensor(a)))
    B, Sq, D = 8, 224, 512
    H, Sk, Dh = 32, 1024, 128
    return {
        "x": _w((lambda *s: torch.randn(*s, dtype=torch.bfloat16) * 0.8)(B, Sq, D)),
        "k_cache": _w((lambda *s: torch.randn(*s, dtype=torch.bfloat16) * 0.8)(B, H, Sk, Dh)),
        "v_cache": _w((lambda *s: torch.randn(*s, dtype=torch.bfloat16) * 0.05)(B, H, Sk, Dh)),
        "wq": _w((lambda *s: torch.randn(*s, dtype=torch.bfloat16) * 0.8)(D, H * Dh) * (D ** -0.5)),
        "wo": _w((lambda *s: torch.randn(*s, dtype=torch.bfloat16) * 0.05)(H * Dh, D) * ((H * Dh) ** -0.5)),
    }

def reference(x, k_cache, v_cache, wq, wo):
    B, Sq, D = x.shape
    H, Dh = 32, 128
    q = (lambda x, *d: x.permute(*d))((x @ wq).reshape(B, Sq, H, Dh), 0, 2, 1, 3)
    scores = torch.einsum("bhqd,bhkd->bhqk", q, k_cache) * (Dh ** -0.5)
    p = _softmax(scores, axis=-1)
    o = torch.einsum("bhqk,bhkd->bhqd", p, v_cache)
    return (lambda x, *d: x.permute(*d))(o, 0, 2, 1, 3).reshape(B, Sq, H * Dh) @ wo
```

```python
import sys, struct

NAME = "standalone__mha_block_cached__near_ridge"
K1 = "attn_kernel"
K2 = NAME + "_kernel"

def f2u(x):
    return struct.unpack("<I", struct.pack("<f", x))[0]

class Asm:
    def __init__(self):
        self.L = []
        self.uid = 0
    def __call__(self, s):
        self.L.append("    " + s)
    def label(self, s):
        self.L.append(s + ":")
    def c(self, s):
        self.L.append("    ; " + s)
    def new(self, base):
        self.uid += 1
        return f"L_{base}_{self.uid}"
    def nop(self, n):
        while n > 0:
            k = min(n, 16)
            self(f"s_nop {k-1}")
            n -= k
    def text(self):
        return "\n".join(self.L) + "\n"

def vr(a, n=1):
    return f"v{a}" if n == 1 else f"v[{a}:{a+n-1}]"
def sr(a, n=1):
    return f"s{a}" if n == 1 else f"s[{a}:{a+n-1}]"

SLOT = 16384
FLAGS = 155648
F_WQ = FLAGS + 0
F_KV = FLAGS + 4
F_DONE = FLAGS + 32
LDS1 = 155904
def wq_loc(c):
    if c < 3: return 131072 + 8192 * c
    if c == 15: return 131072
    return 32768 + (c - 3) * 8192
WO_STAGE = 131072
WS_WOT = 16 << 20
CSCALE = 1.4426950408889634 * (128 ** -0.5)
THRESH = 8.0

def gen_k1(a, opts):
    S_X, S_K, S_V, S_WQ, S_WO, S_WS = 4, 6, 8, 10, 12, 14
    R_K, R_V, R_WQ, R_X, R_O, R_WO, R_WT = 16, 20, 24, 28, 32, 36, 40
    S_B, S_H, S_W = 44, 45, 46
    S_T, S_LAND, S_PREF, S_DONE = 47, 48, 49, 50
    S_TMP, S_TMP2, S_TMP3 = 51, 52, 53
    S_C, S_TH = 54, 55
    S_SOFF = 56
    a.label(K1)
    a("s_cmp_ge_u32 s2, 256")
    a("s_cbranch_scc1 L1_done")
    a(f"s_load_dwordx4 s[4:7], s[0:1], 0")
    a(f"s_load_dwordx4 s[8:11], s[0:1], 16")
    a(f"s_load_dwordx2 s[12:13], s[0:1], 32")
    a(f"s_load_dwordx2 s[14:15], s[0:1], 56")
    a(f"v_lshrrev_b32 v1, 6, v0")
    a(f"v_and_b32 v2, 63, v0")
    a(f"v_readfirstlane_b32 {sr(S_W)}, v1")
    a(f"s_lshr_b32 {sr(S_B)}, s2, 5")
    a(f"s_and_b32 {sr(S_H)}, s2, 31")
    a("s_waitcnt lgkmcnt(0)")
    def srd(R, P, off_sreg, nrec):
        a(f"s_add_u32 {sr(R)}, {sr(P)}, {off_sreg}")
        a(f"s_addc_u32 {sr(R+1)}, {sr(P+1)}, 0")
        a(f"s_and_b32 {sr(R+1)}, {sr(R+1)}, 0xffff")
        a(f"s_mov_b32 {sr(R+2)}, {nrec}")
        a(f"s_mov_b32 {sr(R+3)}, 0x00020000")
    a(f"s_cmp_eq_u32 {sr(S_W)}, 7")
    a("s_cbranch_scc1 L1_producer")

    V_LANE, V_Z, V_FLAG, V_T0, V_T1, V_T2, V_T3, V_T4 = 2, 3, 4, 5, 6, 7, 8, 9
    V_DONEA, V_XOFF, V_L0, V_L1, V_MX = 10, 11, 12, 13, 14
    V_STO = 15
    KA, VA, WA = 16, 24, 28
    QF, OA, SB, NM, PB, TMP, KF, VF = 32, 64, 128, 144, 160, 168, 176, 208
    XF = 128
    a.c("---- consumer: x SRD and loads")
    a(f"s_mul_i32 {sr(S_TMP)}, {sr(S_B)}, 229376")
    srd(R_X, S_X, sr(S_TMP), 229376)
    a(f"v_and_b32 {vr(V_T0)}, 31, {vr(V_LANE)}")
    a(f"v_lshrrev_b32 {vr(V_T1)}, 5, {vr(V_LANE)}")
    a(f"s_lshl_b32 {sr(S_TMP)}, {sr(S_W)}, 15")
    a(f"v_lshlrev_b32 {vr(V_XOFF)}, 10, {vr(V_T0)}")
    a(f"v_lshl_add_u32 {vr(V_XOFF)}, {vr(V_T1)}, 4, {vr(V_XOFF)}")
    a(f"v_add_u32 {vr(V_XOFF)}, {sr(S_TMP)}, {vr(V_XOFF)}")
    for ks in range(32):
        a(f"buffer_load_dwordx4 {vr(XF+4*ks,4)}, {vr(V_XOFF)}, {sr(R_X,4)}, 0 offen offset:{ks*32}")
    a(f"s_mul_i32 {sr(S_TMP)}, {sr(S_B)}, 7")
    a(f"s_add_u32 {sr(S_TMP)}, {sr(S_TMP)}, {sr(S_W)}")
    a(f"s_lshl_b32 {sr(S_TMP)}, {sr(S_TMP)}, 18")
    a(f"s_lshl_b32 {sr(S_TMP2)}, {sr(S_H)}, 13")
    a(f"s_add_u32 {sr(S_TMP)}, {sr(S_TMP)}, {sr(S_TMP2)}")
    srd(R_O, S_WS, sr(S_TMP), 8192)
    a(f"v_lshlrev_b32 {vr(V_STO)}, 4, {vr(V_LANE)}")
    a(f"v_mov_b32 {vr(V_Z)}, 0")
    a(f"s_lshl_b32 {sr(S_TMP)}, {sr(S_W)}, 2")
    a(f"s_add_u32 {sr(S_TMP)}, {sr(S_TMP)}, {F_DONE}")
    a(f"v_mov_b32 {vr(V_DONEA)}, {sr(S_TMP)}")
    a(f"s_mov_b32 {sr(S_C)}, 0x{f2u(CSCALE):08x}")
    a(f"s_mov_b32 {sr(S_TH)}, 0x{f2u(THRESH):08x}")
    a(f"v_and_b32 {vr(V_T2)}, 15, {vr(V_LANE)}")
    a(f"v_xor_b32 {vr(V_T3)}, {vr(V_T1)}, {vr(V_T2)}")
    a(f"v_lshlrev_b32 {vr(V_T3)}, 4, {vr(V_T3)}")
    a(f"v_lshl_add_u32 {vr(KA)}, {vr(V_T0)}, 8, {vr(V_T3)}")
    for s in range(1, 8):
        a(f"v_xor_b32 {vr(KA+s)}, {s<<5}, {vr(KA)}")
    a(f"v_lshrrev_b32 {vr(V_T3)}, 2, {vr(V_T2)}")
    a(f"v_bfe_u32 {vr(V_T4)}, {vr(V_LANE)}, 4, 1")
    VX0, VX1, VX2 = QF, QF+1, QF+2
    a(f"v_bfe_u32 {vr(VX0)}, {vr(V_LANE)}, 1, 1")
    a(f"v_lshl_add_u32 {vr(VX0)}, {vr(V_T4)}, 1, {vr(VX0)}")
    a(f"v_lshlrev_b32 {vr(VX0)}, 4, {vr(VX0)}")
    a(f"v_and_b32 {vr(VX1)}, 1, {vr(V_LANE)}")
    a(f"v_lshl_add_u32 {vr(VX0)}, {vr(VX1)}, 3, {vr(VX0)}")
    a(f"v_lshl_add_u32 {vr(VX0)}, {vr(V_T3)}, 6, {vr(VX0)}")
    a(f"v_lshl_add_u32 {vr(VX1)}, {vr(V_T1)}, 2, {vr(V_T3)}")
    a(f"v_lshl_add_u32 {vr(VX0)}, {vr(VX1)}, 8, {vr(VX0)}")
    a(f"v_add_u32 {vr(VA)}, 8192, {vr(VX0)}")
    for dt in range(1, 4):
        a(f"v_xor_b32 {vr(VA+dt)}, {dt<<6}, {vr(VA)}")
    a(f"v_and_b32 {vr(VX0)}, 1, {vr(V_LANE)}")
    a(f"v_lshl_add_u32 {vr(VX0)}, {vr(V_T4)}, 1, {vr(VX0)}")
    a(f"v_lshlrev_b32 {vr(VX0)}, 4, {vr(VX0)}")
    a(f"v_bfe_u32 {vr(VX1)}, {vr(V_LANE)}, 1, 1")
    a(f"v_lshl_add_u32 {vr(VX0)}, {vr(VX1)}, 3, {vr(VX0)}")
    a(f"v_lshl_add_u32 {vr(VX0)}, {vr(V_T3)}, 6, {vr(VX0)}")
    a(f"v_lshl_add_u32 {vr(VX1)}, {vr(V_T1)}, 3, {vr(V_T3)}")
    a(f"v_lshl_add_u32 {vr(VX2)}, {vr(VX1)}, 8, {vr(VX0)}")
    WQB = VX2
    a(f"v_mov_b32 {vr(V_MX)}, {vr(WQB)}")
    WQB = V_MX
    for r in range(64):
        a(f"v_mov_b32 {vr(OA+r)}, 0")
    a(f"s_mov_b32 {sr(S_LAND)}, 0")
    a("s_barrier")

    def wait_landed(flag_off, need_imm=None, need_sreg=None):
        Lok = a.new("lok"); Lp = a.new("lpoll")
        need = need_imm if need_sreg is None else need_sreg
        a(f"s_cmp_ge_u32 {sr(S_LAND)}, {need}")
        a(f"s_cbranch_scc1 {Lok}")
        a.label(Lp)
        a(f"ds_read_b32 {vr(V_FLAG)}, {vr(V_Z)} offset:{flag_off}" if flag_off < 65536 else f"ds_read_b32 {vr(V_FLAG)}, {vr(V_FLAGA)} offset:{flag_off-FLAGS}")
        a("s_waitcnt lgkmcnt(0)")
        a(f"v_readfirstlane_b32 {sr(S_LAND)}, {vr(V_FLAG)}")
        a(f"s_cmp_ge_u32 {sr(S_LAND)}, {need}")
        a(f"s_cbranch_scc1 {Lok}")
        a("s_sleep 1")
        a(f"s_branch {Lp}")
        a.label(Lok)
    V_FLAGA = V_Z
    a(f"v_mov_b32 {vr(V_FLAGA)}, {FLAGS}")
    def publish_done(val_imm=None, val_sreg=None):
        a(f"v_mov_b32 {vr(V_T0)}, {val_imm if val_sreg is None else val_sreg}")
        a("s_mov_b64 exec, 1")
        a(f"ds_write_b32 {vr(V_DONEA)}, {vr(V_T0)}")
        a("s_mov_b64 exec, -1")

    a.c("---- Q projection")
    AB = QF
    def wq_reads(c, ksp, buf):
        for dt in range(4):
            for u in range(2):
                a(f"ds_read_b64_tr_b16 {vr(AB+16*buf+4*dt+2*u,2)}, {vr(WA+dt)} offset:{ksp*4096+u*1024}")
    def set_wa(c):
        a(f"v_add_u32 {vr(WA)}, {wq_loc(c)}, {vr(WQB)}")
        for dt in range(1, 4):
            a(f"v_xor_b32 {vr(WA+dt)}, {dt<<6}, {vr(WA)}")
    groups = [(c, k) for c in range(16) for k in range(2)]
    wait_landed(F_WQ, need_imm=1)
    set_wa(0)
    wq_reads(0, 0, 0)
    for gi, (c, ksp) in enumerate(groups):
        buf = gi & 1
        if gi + 1 < len(groups):
            c2, k2 = groups[gi+1]
            if k2 == 0:
                wait_landed(F_WQ, need_imm=c2+1)
                set_wa(c2)
            wq_reads(c2, k2, buf ^ 1)
            if k2 == 1:
                publish_done(val_imm=c2+1)
                a("s_waitcnt lgkmcnt(9)")
            else:
                a("s_waitcnt lgkmcnt(8)")
        else:
            a("s_waitcnt lgkmcnt(0)")
        ks = 2*c + ksp
        if gi == 0:
            a("s_waitcnt vmcnt(24)")
        elif gi in (8, 16, 24):
            a(f"s_waitcnt vmcnt({24-gi})")
        for dt in range(4):
            a(f"v_mfma_f32_32x32x16_bf16 {vr(OA+16*dt,16)}, {vr(AB+16*buf+4*dt,4)}, {vr(XF+4*ks,4)}, {vr(OA+16*dt,16)}")
    a.nop(16)
    for r in range(64):
        a(f"v_mul_f32 {vr(OA+r)}, {sr(S_C)}, {vr(OA+r)}")
    for k in range(32):
        a(f"v_cvt_pk_bf16_f32 {vr(QF+k)}, {vr(OA+2*k)}, {vr(OA+2*k+1)}")
    for r in range(64):
        a(f"v_mov_b32 {vr(OA+r)}, 0")
    for r in range(16):
        a(f"v_mov_b32 {vr(NM+r)}, 0")
    a(f"v_mov_b32 {vr(V_L0)}, 0")
    a(f"v_mov_b32 {vr(V_L1)}, 0")
    a(f"s_mov_b32 {sr(S_T)}, 0")
    a(f"s_mov_b32 {sr(S_LAND)}, 0")
    a(f"s_mov_b32 {sr(S_DONE)}, 17")

    def k_reads(j):
        for s in range(8):
            a(f"ds_read_b128 {vr(KF+4*s,4)}, {vr(KA+s)} offset:{j*SLOT}")
    wait_landed(F_KV, need_imm=1)
    k_reads(0)
    a.c("---- attention loop")
    a.label("L1_loop")
    rare_blocks = []
    for j in range(4):
        a.c(f"tile slot {j}")
        a(f"ds_read_b32 {vr(V_FLAG)}, {vr(V_FLAGA)} offset:{F_KV-FLAGS}")
        a("s_waitcnt lgkmcnt(1)")
        vreads = [(s2, dt, u) for s2 in range(2) for dt in range(4) for u in range(2)]
        for s in range(8):
            srcC = NM if s == 0 else SB
            a(f"v_mfma_f32_32x32x16_bf16 {vr(SB,16)}, {vr(KF+4*s,4)}, {vr(QF+4*s,4)}, {vr(srcC,16)}")
            for (s2, dt, u) in vreads[2*s:2*s+2]:
                a(f"ds_read_b64_tr_b16 {vr(VF+16*s2+4*dt+2*u,2)}, {vr(VA+dt)} offset:{j*SLOT+s2*4096+u*2048}")
        publish_done(val_sreg=sr(S_DONE))
        a(f"s_add_u32 {sr(S_DONE)}, {sr(S_DONE)}, 1")
        if j == 3:
            for s in range(8):
                a(f"v_xor_b32 {vr(KA+s)}, 0x10000, {vr(KA+s)}")
            for dt in range(4):
                a(f"v_xor_b32 {vr(VA+dt)}, 0x10000, {vr(VA+dt)}")
        a("s_waitcnt lgkmcnt(15)")
        a(f"v_readfirstlane_b32 {sr(S_LAND)}, {vr(V_FLAG)}")
        a(f"s_add_u32 {sr(S_TMP)}, {sr(S_T)}, 2")
        Lnp = a.new("nopref"); Lsm = a.new("sm")
        a(f"s_cmp_ge_u32 {sr(S_LAND)}, {sr(S_TMP)}")
        a(f"s_cbranch_scc0 {Lnp}")
        k_reads((j+1) & 3)
        a(f"s_mov_b32 {sr(S_PREF)}, 1")
        a(f"s_branch {Lsm}")
        a.label(Lnp)
        a(f"s_mov_b32 {sr(S_PREF)}, 0")
        a("s_waitcnt lgkmcnt(0)")
        a.nop(8)
        a.label(Lsm)
        T = TMP
        a(f"v_max3_f32 {vr(T)}, {vr(SB)}, {vr(SB+1)}, {vr(SB+2)}")
        a(f"v_max3_f32 {vr(T+1)}, {vr(SB+3)}, {vr(SB+4)}, {vr(SB+5)}")
        a(f"v_max3_f32 {vr(T+2)}, {vr(SB+6)}, {vr(SB+7)}, {vr(SB+8)}")
        a(f"v_max3_f32 {vr(T+3)}, {vr(SB+9)}, {vr(SB+10)}, {vr(SB+11)}")
        a(f"v_max3_f32 {vr(T+4)}, {vr(SB+12)}, {vr(SB+13)}, {vr(SB+14)}")
        a(f"v_max3_f32 {vr(T)}, {vr(T)}, {vr(T+1)}, {vr(SB+15)}")
        a(f"v_max3_f32 {vr(T+2)}, {vr(T+2)}, {vr(T+3)}, {vr(T+4)}")
        a(f"v_max_f32 {vr(V_MX)}, {vr(T)}, {vr(T+2)}")
        Lrare = a.new("rare"); Lback = a.new("back"); Lfirst = a.new("first")
        if j == 0:
            a(f"s_cmp_eq_u32 {sr(S_T)}, 0")
            a(f"s_cbranch_scc1 {Lfirst}")
        a(f"v_cmp_lt_f32 vcc, {sr(S_TH)}, {vr(V_MX)}")
        a(f"s_cbranch_vccnz {Lrare}")
        a.label(Lback)
        rare_blocks.append((Lrare, Lback, Lfirst if j == 0 else None))
        for r in range(16):
            a(f"v_exp_f32 {vr(SB+r)}, {vr(SB+r)}")
        for k in range(8):
            a(f"v_add_f32 {vr(V_L0)}, {vr(V_L0)}, {vr(SB+2*k)}")
            a(f"v_add_f32 {vr(V_L1)}, {vr(V_L1)}, {vr(SB+2*k+1)}")
            a(f"v_cvt_pk_bf16_f32 {vr(PB+k)}, {vr(SB+2*k)}, {vr(SB+2*k+1)}")
        a("s_waitcnt lgkmcnt(8)")
        a("s_nop 0")
        for s2 in range(2):
            for dt in range(4):
                a(f"v_mfma_f32_32x32x16_bf16 {vr(OA+16*dt,16)}, {vr(VF+16*s2+4*dt,4)}, {vr(PB+4*s2,4)}, {vr(OA+16*dt,16)}")
        Lnext = a.new("next")
        a(f"s_add_u32 {sr(S_T)}, {sr(S_T)}, 1")
        if j == 3:
            a(f"s_cmp_eq_u32 {sr(S_T)}, 32")
            a("s_cbranch_scc1 L1_epi")
        a(f"s_cmp_eq_u32 {sr(S_PREF)}, 1")
        a(f"s_cbranch_scc1 {Lnext}")
        a(f"s_add_u32 {sr(S_TMP)}, {sr(S_T)}, 1")
        wait_landed(F_KV, need_sreg=sr(S_TMP))
        k_reads((j+1) & 3)
        a.label(Lnext)
    a("s_branch L1_loop")
    for (Lrare, Lback, Lfirst) in rare_blocks:
        T = TMP
        for first in ([False, True] if Lfirst else [False]):
            a.label(Lfirst if first else Lrare)
            a(f"v_mov_b32 {vr(T)}, {vr(V_MX)}")
            a.nop(2)
            a(f"v_permlane32_swap_b32 {vr(T)}, {vr(V_MX)}")
            a.nop(2)
            if first:
                a(f"v_max_f32 {vr(T)}, {vr(T)}, {vr(V_MX)}")
            else:
                a(f"v_max3_f32 {vr(T)}, {vr(T)}, {vr(V_MX)}, 0")
            a(f"v_sub_f32 {vr(T+1)}, {vr(NM)}, {vr(T)}")
            for r in range(16):
                a(f"v_sub_f32 {vr(SB+r)}, {vr(SB+r)}, {vr(T)}")
            for r in range(16):
                a(f"v_mov_b32 {vr(NM+r)}, {vr(T+1)}")
            if not first:
                a(f"v_sub_f32 {vr(T+2)}, 0, {vr(T)}")
                a(f"v_exp_f32 {vr(T+2)}, {vr(T+2)}")
                a.nop(1)
                a(f"v_mul_f32 {vr(V_L0)}, {vr(V_L0)}, {vr(T+2)}")
                a(f"v_mul_f32 {vr(V_L1)}, {vr(V_L1)}, {vr(T+2)}")
                for r in range(64):
                    a(f"v_mul_f32 {vr(OA+r)}, {vr(OA+r)}, {vr(T+2)}")
            a(f"s_branch {Lback}")
    a.label("L1_epi")
    T = TMP
    a(f"v_add_f32 {vr(V_L0)}, {vr(V_L0)}, {vr(V_L1)}")
    a(f"v_mov_b32 {vr(T)}, {vr(V_L0)}")
    a.nop(2)
    a(f"v_permlane32_swap_b32 {vr(T)}, {vr(V_L0)}")
    a.nop(2)
    a(f"v_add_f32 {vr(T)}, {vr(T)}, {vr(V_L0)}")
    a(f"v_rcp_f32 {vr(T)}, {vr(T)}")
    a.nop(12)
    for r in range(64):
        a(f"v_mul_f32 {vr(OA+r)}, {vr(OA+r)}, {vr(T)}")
    for k in range(32):
        a(f"v_cvt_pk_bf16_f32 {vr(KF+k)}, {vr(OA+2*k)}, {vr(OA+2*k+1)}")
    for f in range(8):
        so = "0" if f < 4 else sr(S_SOFF)
        if f == 4:
            a(f"s_mov_b32 {sr(S_SOFF)}, 4096")
        a(f"buffer_store_dwordx4 {vr(KF+4*f,4)}, {vr(V_STO)}, {sr(R_O,4)}, {so} offen offset:{(f&3)*1024}")
    a("s_endpgm")

    a.label("L1_producer")
    a("s_setprio 3")
    PV_K, PV_V, PV_WQ, PV_WO = 8, 12, 13, 14
    PV_DA, PV_D, PV_T0, PV_T1, PV_T2, PV_FA = 15, 16, 17, 18, 19, 20
    PV_TA = 21
    a(f"s_lshl_b32 {sr(S_TMP)}, s2, 18")
    srd(R_K, S_K, sr(S_TMP), 262144)
    srd(R_V, S_V, sr(S_TMP), 262144)
    a(f"s_lshl_b32 {sr(S_TMP)}, {sr(S_H)}, 8")
    a(f"s_sub_u32 {sr(S_TMP2)}, 4194304, {sr(S_TMP)}")
    srd(R_WQ, S_WQ, sr(S_TMP), sr(S_TMP2))
    a(f"s_lshl_b32 {sr(S_TMP)}, {sr(S_H)}, 17")
    a(f"s_lshl_b32 {sr(S_TMP2)}, {sr(S_B)}, 7")
    a(f"s_add_u32 {sr(S_TMP)}, {sr(S_TMP)}, {sr(S_TMP2)}")
    a(f"s_sub_u32 {sr(S_TMP2)}, 131072, {sr(S_TMP2)}")
    srd(R_WO, S_WO, sr(S_TMP), sr(S_TMP2))
    a(f"s_lshl_b32 {sr(S_TMP)}, {sr(S_B)}, 6")
    a(f"s_add_u32 {sr(S_TMP)}, {sr(S_TMP)}, {sr(S_H)}")
    a(f"s_lshl_b32 {sr(S_TMP)}, {sr(S_TMP)}, 13")
    a(f"s_add_u32 {sr(S_TMP)}, {sr(S_TMP)}, {WS_WOT}")
    srd(R_WT, S_WS, sr(S_TMP), 262144 + 8192)
    a(f"v_lshrrev_b32 {vr(PV_T0)}, 4, v2")
    a(f"v_and_b32 {vr(PV_T1)}, 15, v2")
    for i in range(4):
        a(f"v_add_u32 {vr(PV_T2)}, {4*i}, {vr(PV_T0)}")
        a(f"v_xor_b32 {vr(PV_T2)}, {vr(PV_T2)}, {vr(PV_T1)}")
        a(f"v_lshlrev_b32 {vr(PV_T2)}, 4, {vr(PV_T2)}")
        a(f"v_lshl_add_u32 {vr(PV_K+i)}, {vr(PV_T0)}, 8, {vr(PV_T2)}")
    a(f"v_lshlrev_b32 {vr(PV_T2)}, 2, {vr(PV_T0)}")
    a(f"v_xor_b32 {vr(PV_T2)}, {vr(PV_T2)}, {vr(PV_T1)}")
    a(f"v_lshlrev_b32 {vr(PV_T2)}, 4, {vr(PV_T2)}")
    a(f"v_lshl_add_u32 {vr(PV_V)}, {vr(PV_T0)}, 8, {vr(PV_T2)}")
    a(f"v_lshl_add_u32 {vr(PV_WQ)}, {vr(PV_T0)}, 13, {vr(PV_T2)}")
    a(f"v_lshrrev_b32 {vr(PV_T0)}, 3, v2")
    a(f"v_and_b32 {vr(PV_T1)}, 7, v2")
    a(f"v_lshlrev_b32 {vr(PV_T1)}, 4, {vr(PV_T1)}")
    a(f"v_lshl_add_u32 {vr(PV_WO)}, {vr(PV_T0)}, 10, {vr(PV_T1)}")
    a(f"v_and_b32 {vr(PV_T0)}, 7, v2")
    a(f"v_lshlrev_b32 {vr(PV_T0)}, 2, {vr(PV_T0)}")
    a(f"v_add_u32 {vr(PV_DA)}, {F_DONE}, {vr(PV_T0)}")
    a(f"v_mov_b32 {vr(PV_FA)}, {FLAGS}")
    a(f"v_lshrrev_b32 {vr(PV_T0)}, 5, v2")
    a(f"v_bfe_u32 {vr(PV_T1)}, v2, 2, 2")
    a(f"v_lshl_add_u32 {vr(PV_T0)}, {vr(PV_T0)}, 2, {vr(PV_T1)}")
    a(f"v_lshlrev_b32 {vr(PV_T0)}, 7, {vr(PV_T0)}")
    a(f"v_bfe_u32 {vr(PV_T1)}, v2, 4, 1")
    a(f"v_lshl_add_u32 {vr(PV_T0)}, {vr(PV_T1)}, 5, {vr(PV_T0)}")
    a(f"v_and_b32 {vr(PV_T1)}, 3, v2")
    a(f"v_lshl_add_u32 {vr(PV_T0)}, {vr(PV_T1)}, 3, {vr(PV_T0)}")
    a(f"v_add_u32 {vr(PV_TA)}, {WO_STAGE}, {vr(PV_T0)}")
    a(f"v_lshlrev_b32 {vr(PV_T0)}, 2, v2")
    a(f"v_add_u32 {vr(PV_T0)}, {FLAGS}, {vr(PV_T0)}")
    a(f"v_mov_b32 {vr(PV_T1)}, 0")
    a(f"v_cmp_eq_u32 vcc, 15, v2")
    a(f"v_mov_b32 {vr(PV_T2)}, 0x7fffffff")
    a("s_nop 1")
    a(f"v_cndmask_b32 {vr(PV_T1)}, {vr(PV_T1)}, {vr(PV_T2)}, vcc")
    a("s_mov_b64 exec, 0xffff")
    a(f"ds_write_b32 {vr(PV_T0)}, {vr(PV_T1)}")
    a("s_mov_b64 exec, -1")

    issued = []
    published = {"wq": 0, "kv": 0}
    landed_upto = [0]
    ntq = " nt" if opts.get("nt_wq") else ""
    def issue_wq(c):
        loc = wq_loc(c)
        for i in range(8):
            a(f"s_mov_b32 m0, {loc + i*1024}")
            a(f"s_mov_b32 {sr(S_SOFF)}, {(c*32 + 4*i)*8192}")
            a(f"buffer_load_dwordx4 {vr(PV_WQ)}, {sr(R_WQ,4)}, {sr(S_SOFF)} offen{ntq} lds")
        issued.append(("wq", c, 8))
    def issue_kv(t):
        base = (t & 7) * SLOT
        for half in range(2):
            for q in range(2):
                a(f"s_mov_b32 m0, {base + half*8192 + q*4096}")
                a(f"s_mov_b32 {sr(S_SOFF)}, {t*8192 + q*4096}")
                for i in range(4):
                    vo = PV_K + i if half == 0 else PV_V
                    R = R_K if half == 0 else R_V
                    a(f"buffer_load_dwordx4 {vr(vo)}, {sr(R,4)}, {sr(S_SOFF)} offen offset:{i*1024} nt lds")
        issued.append(("kv", t, 16))
    def issue_wo():
        for i in range(16):
            a(f"s_mov_b32 m0, {WO_STAGE + i*1024}")
            a(f"s_mov_b32 {sr(S_SOFF)}, {i*8*1024}")
            a(f"buffer_load_dwordx4 {vr(PV_WO)}, {sr(R_WO,4)}, {sr(S_SOFF)} offen lds")
        issued.append(("wo", 0, 16))
    pending_wo = [False]
    def settle(cap):
        tot = 0
        n = len(issued)
        k = n
        while k > landed_upto[0] and tot + issued[k-1][2] <= cap:
            tot += issued[k-1][2]; k -= 1
        if k <= landed_upto[0]:
            return
        a(f"s_waitcnt vmcnt({tot})")
        newwq, newkv = published["wq"], published["kv"]
        for g in issued[landed_upto[0]:k]:
            if g[0] == "wq": newwq = g[1] + 1
            if g[0] == "kv": newkv = g[1] + 1
            if g[0] == "wo": pending_wo[0] = True
        landed_upto[0] = k
        a("s_mov_b64 exec, 1")
        if newwq != published["wq"]:
            a(f"v_mov_b32 {vr(PV_T0)}, {newwq}")
            a(f"ds_write_b32 {vr(PV_FA)}, {vr(PV_T0)} offset:{F_WQ-FLAGS}")
            published["wq"] = newwq
        if newkv != published["kv"]:
            a(f"v_mov_b32 {vr(PV_T1)}, {newkv}")
            a(f"ds_write_b32 {vr(PV_FA)}, {vr(PV_T1)} offset:{F_KV-FLAGS}")
            published["kv"] = newkv
        a("s_mov_b64 exec, -1")
        if pending_wo[0]:
            pending_wo[0] = False
            do_wo_transpose()
    def do_wo_transpose():
        WB = 32
        for nt in range(2):
            for f in range(8):
                dt, u = f >> 1, f & 1
                for up in range(2):
                    off = (32*dt + 16*u + 8*up) * 128 + 64*nt
                    a(f"ds_read_b64_tr_b16 {vr(WB + (nt*8+f)*4 + 2*up, 2)}, {vr(PV_TA)} offset:{off}")
        a("s_waitcnt lgkmcnt(0)")
        a(f"v_lshlrev_b32 {vr(PV_T2)}, 4, v2")
        for nt in range(2):
            for f in range(8):
                a(f"s_mov_b32 {sr(S_SOFF)}, {nt*262144 + (f>>2)*4096}")
                a(f"buffer_store_dwordx4 {vr(WB + (nt*8+f)*4, 4)}, {vr(PV_T2)}, {sr(R_WT,4)}, {sr(S_SOFF)} offen offset:{(f&3)*1024}")
        issued.append(("st", 0, 16))
    def wait_done(need):
        if need <= 16:
            assert published["wq"] >= need, (need, published)
        else:
            assert published["wq"] == 16 and published["kv"] >= need - 16, (need, published)
        Lp = a.new("pw"); Lok = a.new("pok")
        a.label(Lp)
        a(f"ds_read_b32 {vr(PV_D)}, {vr(PV_DA)}")
        a("s_waitcnt lgkmcnt(0)")
        a(f"v_cmp_gt_u32 vcc, {need}, {vr(PV_D)}")
        a(f"s_cbranch_vccz {Lok}")
        a("s_sleep 2")
        a(f"s_branch {Lp}")
        a.label(Lok)
    CAP = opts.get("cap", 32)
    for c in range(5):
        issue_wq(c)
    a("s_waitcnt lgkmcnt(0)")
    a("s_barrier")
    for c in range(5, 15):
        issue_wq(c)
        settle(40)
    issue_kv(0); settle(40)
    issue_kv(1); settle(40)
    wait_done(1)
    issue_wq(15); settle(CAP)
    for t in range(2, 32):
        need = 2*t + 1 if t <= 7 else t + 9
        if need <= 16:
            while published["wq"] < need: settle(0)
        else:
            while published["wq"] < 16 or published["kv"] < need - 16: settle(0)
        wait_done(need)
        issue_kv(t); settle(CAP)
        if t == 12:
            issue_wo(); settle(CAP)
    settle(16)
    settle(0)
    a("s_waitcnt vmcnt(0) lgkmcnt(0)")
    a.label("L1_done")
    a("s_endpgm")

def gen_k2(a, opts):
    S_WS, S_OUT = 4, 6
    R_O, R_W, R_OUT = 8, 12, 16
    S_W, S_QP, S_NP, S_T, S_T2, S_SO = 20, 21, 22, 23, 24, 25
    a.label(K2)
    a("s_cmp_ge_u32 s2, 224")
    a("s_cbranch_scc1 L2_done")
    a("s_load_dwordx2 s[4:5], s[0:1], 56")
    a("s_load_dwordx2 s[6:7], s[0:1], 40")
    a("v_lshrrev_b32 v1, 6, v0")
    a("v_and_b32 v2, 63, v0")
    a(f"v_readfirstlane_b32 {sr(S_W)}, v1")
    a(f"s_and_b32 {sr(S_T)}, s2, 1")
    a(f"s_lshl_b32 {sr(S_T)}, {sr(S_T)}, 2")
    a(f"s_lshr_b32 {sr(S_T2)}, s2, 3")
    a(f"s_and_b32 {sr(S_NP)}, {sr(S_T2)}, 3")
    a(f"s_add_u32 {sr(S_NP)}, {sr(S_NP)}, {sr(S_T)}")
    a(f"s_lshr_b32 {sr(S_T2)}, {sr(S_T2)}, 2")
    a(f"s_bfe_u32 {sr(S_T)}, s2, 0x20001")
    a(f"s_mul_i32 {sr(S_T)}, {sr(S_T)}, 7")
    a(f"s_add_u32 {sr(S_QP)}, {sr(S_T)}, {sr(S_T2)}")
    a("s_waitcnt lgkmcnt(0)")
    def srd(R, P, off_sreg, nrec):
        a(f"s_add_u32 {sr(R)}, {sr(P)}, {off_sreg}")
        a(f"s_addc_u32 {sr(R+1)}, {sr(P+1)}, 0")
        a(f"s_and_b32 {sr(R+1)}, {sr(R+1)}, 0xffff")
        a(f"s_mov_b32 {sr(R+2)}, {nrec}")
        a(f"s_mov_b32 {sr(R+3)}, 0x00020000")
    a(f"s_lshl_b32 {sr(S_T)}, {sr(S_QP)}, 19")
    srd(R_O, S_WS, sr(S_T), 524288)
    a(f"s_lshl_b32 {sr(S_T)}, {sr(S_NP)}, 19")
    a(f"s_add_u32 {sr(S_T)}, {sr(S_T)}, {WS_WOT}")
    srd(R_W, S_WS, sr(S_T), 524288)
    a(f"s_lshl_b32 {sr(S_T)}, {sr(S_QP)}, 16")
    a(f"s_lshl_b32 {sr(S_T2)}, {sr(S_NP)}, 7")
    a(f"s_add_u32 {sr(S_T)}, {sr(S_T)}, {sr(S_T2)}")
    a(f"s_sub_u32 {sr(S_T2)}, 65536, {sr(S_T2)}")
    srd(R_OUT, S_OUT, sr(S_T), sr(S_T2))
    V_LO, V_HI = 3, 4
    a(f"s_lshl_b32 {sr(S_T)}, {sr(S_W)}, 15")
    a(f"v_lshlrev_b32 {vr(V_LO)}, 4, v2")
    a(f"v_add_u32 {vr(V_LO)}, {sr(S_T)}, {vr(V_LO)}")
    a(f"v_add_u32 {vr(V_HI)}, 0x40000, {vr(V_LO)}")
    PD = opts.get("pd", 8)
    ACC = 16
    BUF = 80
    def loads(ks):
        b = BUF + (ks % PD) * 16
        a(f"s_mov_b32 {sr(S_SO)}, {(ks>>2)*4096}")
        o = (ks & 3) * 1024
        a(f"buffer_load_dwordx4 {vr(b,4)}, {vr(V_LO)}, {sr(R_W,4)}, {sr(S_SO)} offen offset:{o}")
        a(f"buffer_load_dwordx4 {vr(b+4,4)}, {vr(V_HI)}, {sr(R_W,4)}, {sr(S_SO)} offen offset:{o}")
        a(f"buffer_load_dwordx4 {vr(b+8,4)}, {vr(V_LO)}, {sr(R_O,4)}, {sr(S_SO)} offen offset:{o}")
        a(f"buffer_load_dwordx4 {vr(b+12,4)}, {vr(V_HI)}, {sr(R_O,4)}, {sr(S_SO)} offen offset:{o}")
    for ks in range(PD):
        loads(ks)
    for r in range(64):
        a(f"v_mov_b32 {vr(ACC+r)}, 0")
    for ks in range(32):
        rem = min(PD - 1, 31 - ks)
        a(f"s_waitcnt vmcnt({4*rem})")
        b = BUF + (ks % PD) * 16
        for qi in range(2):
            for ni in range(2):
                t = qi*2 + ni
                a(f"v_mfma_f32_32x32x16_bf16 {vr(ACC+16*t,16)}, {vr(b+4*ni,4)}, {vr(b+8+4*qi,4)}, {vr(ACC+16*t,16)}")
        if ks + PD < 32:
            loads(ks + PD)
    a.nop(16)
    V_A = 5
    a(f"s_lshl_b32 {sr(S_T)}, {sr(S_W)}, 14")
    a(f"v_lshlrev_b32 {vr(V_A)}, 4, v2")
    a(f"v_add_u32 {vr(6)}, {sr(S_T)}, {vr(V_A)}")
    for t in range(4):
        for rq in range(4):
            a(f"ds_write_b128 v6, {vr(ACC+16*t+4*rq,4)} offset:{t*4096+rq*1024}")
    a("s_waitcnt lgkmcnt(0)")
    a("s_barrier")
    a(f"s_lshl_b32 {sr(S_T)}, {sr(S_W)}, 11")
    a(f"v_add_u32 {vr(6)}, {sr(S_T)}, {vr(V_A)}")
    a(f"v_add_u32 {vr(7)}, 0x10000, {vr(6)}")
    RB = 80
    for w in range(8):
        for e in range(2):
            va = 6 if w < 4 else 7
            a(f"ds_read_b128 {vr(RB + (w*2+e)*4, 4)}, v{va} offset:{(w&3)*16384 + e*1024}")
    a("s_waitcnt lgkmcnt(0)")
    for e in range(2):
        for r in range(4):
            for w in range(1, 8):
                a(f"v_add_f32 {vr(RB+e*4+r)}, {vr(RB+e*4+r)}, {vr(RB+(w*2+e)*4+r)}")
    for e in range(2):
        a(f"v_cvt_pk_bf16_f32 {vr(16+2*e)}, {vr(RB+e*4)}, {vr(RB+e*4+1)}")
        a(f"v_cvt_pk_bf16_f32 {vr(17+2*e)}, {vr(RB+e*4+2)}, {vr(RB+e*4+3)}")
    a(f"s_lshr_b32 {sr(S_T)}, {sr(S_W)}, 2")
    a(f"s_lshl_b32 {sr(S_T)}, {sr(S_T)}, 15")
    a(f"s_and_b32 {sr(S_T2)}, {sr(S_W)}, 3")
    a(f"s_lshl_b32 {sr(S_T2)}, {sr(S_T2)}, 5")
    a(f"s_add_u32 {sr(S_T)}, {sr(S_T)}, {sr(S_T2)}")
    a("v_and_b32 v8, 31, v2")
    a("v_lshlrev_b32 v8, 10, v8")
    a("v_lshrrev_b32 v9, 5, v2")
    a("v_lshl_add_u32 v8, v9, 3, v8")
    a(f"v_add_u32 v8, {sr(S_T)}, v8")
    a(f"buffer_store_dwordx2 v[16:17], v8, {sr(R_OUT,4)}, 0 offen")
    a(f"buffer_store_dwordx2 v[18:19], v8, {sr(R_OUT,4)}, 0 offen offset:16")
    a.label("L2_done")
    a("s_endpgm")

HEADER = open("standalone__mha_block_cached__near_ridge.s.ref").read().split("; Override launch")[0]

def desc(name, vgpr, sgpr):
    return f""".amdhsa_kernel {name}
  .amdhsa_next_free_vgpr {vgpr}
  .amdhsa_next_free_sgpr {sgpr}
  .amdhsa_accum_offset {(vgpr+3)//4*4}
  .amdhsa_group_segment_fixed_size 0
  .amdhsa_kernarg_size 64
  .amdhsa_user_sgpr_count 2
  .amdhsa_user_sgpr_kernarg_segment_ptr 1
  .amdhsa_system_sgpr_workgroup_id_x 1
.end_amdhsa_kernel
"""

def build(opts):
    out = HEADER
    out += f"; @launch kernel={K1} grid=(256,1,1) block=(512,1,1) lds={LDS1}\n"
    out += f"; @launch kernel={K2} grid=(224,1,1) block=(512,1,1) lds=131072\n"
    out += '.amdgcn_target "amdgcn-amd-amdhsa--gfx950"\n.text\n'
    a = Asm()
    out += f".globl {K1}\n.p2align 8\n.type {K1},@function\n"
    gen_k1(a, opts)
    out += a.text()
    a2 = Asm(); a2.uid = 100000
    out += f".globl {K2}\n.p2align 8\n.type {K2},@function\n"
    gen_k2(a2, opts)
    out += a2.text()
    out += '.section .rodata,"a"\n.p2align 6\n'
    out += desc(K1, 256, 64)
    out += ".p2align 6\n"
    out += desc(K2, 208, 32)
    return out

if __name__ == "__main__":
    opts = {}
    path = "standalone__mha_block_cached__near_ridge.s"
    for arg in sys.argv[1:]:
        if arg.startswith("-o"):
            path = arg[2:]
        else:
            k, v = arg.split("=")
            opts[k] = int(v)
    open(path, "w").write(build(opts))
    print("wrote", path)
```

```python
import sys, struct

NAME = "standalone__mha_block_cached__near_ridge"
K1 = "attn_kernel"
K2 = NAME + "_kernel"

def f2u(x):
    return struct.unpack("<I", struct.pack("<f", x))[0]

class Asm:
    def __init__(self):
        self.L = []
        self.uid = 0
    def __call__(self, s):
        self.L.append("    " + s)
    def label(self, s):
        self.L.append(s + ":")
    def c(self, s):
        self.L.append("    ; " + s)
    def new(self, base):
        self.uid += 1
        return f"L_{base}_{self.uid}"
    def nop(self, n):
        while n > 0:
            k = min(n, 16)
            self(f"s_nop {k-1}")
            n -= k
    def text(self):
        return "\n".join(self.L) + "\n"

def vr(a, n=1):
    return f"v{a}" if n == 1 else f"v[{a}:{a+n-1}]"
def sr(a, n=1):
    return f"s{a}" if n == 1 else f"s[{a}:{a+n-1}]"

SLOT = 16384
FLAGS = 155648
F_WQ = FLAGS + 0
F_KV = FLAGS + 4
F_DONE = FLAGS + 32
LDS1 = 155904
XS0 = 49152
WQ0 = 106496
def wq_loc(c):
    return WQ0 + (c % 6) * 8192
WO_STAGE = 131072
WS_WOT = 16 << 20
CSCALE = 1.4426950408889634 * (128 ** -0.5)
THRESH = 8.0

def gen_k1(a, opts):
    S_X, S_K, S_V, S_WQ, S_WO, S_WS = 4, 6, 8, 10, 12, 14
    R_K, R_V, R_WQ, R_X, R_O, R_WO, R_WT = 16, 20, 24, 28, 32, 36, 40
    S_B, S_H, S_W = 44, 45, 46
    S_T, S_LAND, S_PREF, S_DONE = 47, 48, 49, 50
    S_TMP, S_TMP2, S_TMP3 = 51, 52, 53
    S_C, S_TH = 54, 55
    S_SOFF, S_XS = 56, 57
    a.label(K1)
    a("s_cmp_ge_u32 s2, 256")
    a("s_cbranch_scc1 L1_done")
    a(f"s_load_dwordx4 s[4:7], s[0:1], 0")
    a(f"s_load_dwordx4 s[8:11], s[0:1], 16")
    a(f"s_load_dwordx2 s[12:13], s[0:1], 32")
    a(f"s_load_dwordx2 s[14:15], s[0:1], 56")
    a(f"v_lshrrev_b32 v1, 6, v0")
    a(f"v_and_b32 v2, 63, v0")
    a(f"v_readfirstlane_b32 {sr(S_W)}, v1")
    a(f"s_lshr_b32 {sr(S_B)}, s2, 5")
    a(f"s_and_b32 {sr(S_H)}, s2, 31")
    a("s_waitcnt lgkmcnt(0)")
    def srd(R, P, off_sreg, nrec):
        a(f"s_add_u32 {sr(R)}, {sr(P)}, {off_sreg}")
        a(f"s_addc_u32 {sr(R+1)}, {sr(P+1)}, 0")
        a(f"s_and_b32 {sr(R+1)}, {sr(R+1)}, 0xffff")
        a(f"s_mov_b32 {sr(R+2)}, {nrec}")
        a(f"s_mov_b32 {sr(R+3)}, 0x00020000")
    PROF = opts.get("prof", 0)
    STF = ["", " sc1", " nt", " sc0 sc1", " sc1 nt"][opts.get("stf", 0)]
    R_PR = 96
    stamp_n = [0]
    def stamp():
        if not PROF: return
        k = stamp_n[0]; stamp_n[0] += 1
        assert k < 12
        a(f"s_memtime s[{64+2*k}:{65+2*k}]")
    def acc_begin():
        if not PROF: return
        a("s_memtime s[90:91]"); a("s_waitcnt lgkmcnt(0)")
    def acc_end(reg):
        if not PROF: return
        a("s_memtime s[92:93]"); a("s_waitcnt lgkmcnt(0)")
        a("s_sub_u32 s92, s92, s90"); a(f"s_add_u32 s{reg}, s{reg}, s92")
    def prof_store():
        if not PROF: return
        a("s_waitcnt lgkmcnt(0)")
        a(f"s_lshl_b32 {sr(S_TMP)}, s2, 3"); a(f"s_add_u32 {sr(S_TMP)}, {sr(S_TMP)}, {sr(S_W)}"); a(f"s_lshl_b32 {sr(S_TMP)}, {sr(S_TMP)}, 7")
        a(f"s_add_u32 {sr(S_TMP)}, {sr(S_TMP)}, {32<<20}")
        srd(R_PR, S_WS, sr(S_TMP), 128)
        a("v_mov_b32 v1, 0")
        for k in range(12):
            a(f"v_mov_b32 v0, s{64+2*k}")
            a(f"buffer_store_dword v0, v1, s[96:99], 0 offen offset:{4*k}")
        for k in range(2):
            a(f"v_mov_b32 v0, s{88+k}")
            a(f"buffer_store_dword v0, v1, s[96:99], 0 offen offset:{48+4*k}")
        a("s_memrealtime s[92:93]"); a("s_waitcnt lgkmcnt(0)")
        a("v_mov_b32 v0, s94"); a("buffer_store_dword v0, v1, s[96:99], 0 offen offset:56")
        a("v_mov_b32 v0, s92"); a("buffer_store_dword v0, v1, s[96:99], 0 offen offset:60")
    if PROF:
        for k in range(64, 90): a(f"s_mov_b32 s{k}, 0")
        a("s_memrealtime s[94:95]")
    stamp()
    a(f"s_cmp_eq_u32 {sr(S_W)}, 7")
    a("s_cbranch_scc1 L1_producer")

    V_LANE, V_FLAGA, V_FLAG, V_T0, V_T1, V_T2, V_T3, V_T4 = 2, 3, 4, 5, 6, 7, 8, 9
    V_DONEA, V_WQB, V_L0, V_L1, V_MX = 10, 11, 12, 13, 14
    V_STO = 15
    KA, VA, WA = 16, 24, 28
    QF, OA, SB0, NM, PB, TMP, KF, VF, SB1 = 32, 64, 128, 144, 160, 168, 176, 208, 240
    XF = 128
    XA, XV = 160, 164
    if opts.get("prio", 0) == 1:
        a(f"s_cmp_lt_u32 {sr(S_W)}, 4")
        a("s_cbranch_scc1 L1_noprio")
        a("s_setprio 1")
        a.label("L1_noprio")
    a.c("---- consumer: x SRD (per wave rows) and DMA of first two x chunks")
    a(f"s_mul_i32 {sr(S_TMP)}, {sr(S_B)}, 229376")
    a(f"s_lshl_b32 {sr(S_TMP2)}, {sr(S_W)}, 15")
    a(f"s_add_u32 {sr(S_TMP)}, {sr(S_TMP)}, {sr(S_TMP2)}")
    srd(R_X, S_X, sr(S_TMP), 32768)
    a(f"s_lshl_b32 {sr(S_XS)}, {sr(S_W)}, 13")
    a(f"s_add_u32 {sr(S_XS)}, {sr(S_XS)}, {XS0}")
    a(f"v_lshrrev_b32 {vr(V_T0)}, 4, {vr(V_LANE)}")
    a(f"v_and_b32 {vr(V_T1)}, 7, {vr(V_LANE)}")
    a(f"v_xor_b32 {vr(V_T1)}, {vr(V_T1)}, {vr(V_T0)}")
    a(f"v_lshlrev_b32 {vr(V_T1)}, 4, {vr(V_T1)}")
    a(f"v_lshrrev_b32 {vr(V_T0)}, 3, {vr(V_LANE)}")
    a(f"v_lshl_add_u32 {vr(XV)}, {vr(V_T0)}, 10, {vr(V_T1)}")
    a(f"v_xor_b32 {vr(XV+1)}, 64, {vr(XV)}")
    def x_dma(kc):
        for i in range(4):
            a(f"s_add_u32 m0, {sr(S_XS)}, {(kc&1)*4096 + i*1024}")
            a(f"s_mov_b32 {sr(S_SOFF)}, {kc*128 + i*8192}")
            a(f"buffer_load_dwordx4 {vr(XV+(i&1))}, {sr(R_X,4)}, {sr(S_SOFF)} offen lds")
    x_dma(0); x_dma(1)
    stamp()
    a(f"s_mul_i32 {sr(S_TMP)}, {sr(S_B)}, 7")
    a(f"s_add_u32 {sr(S_TMP)}, {sr(S_TMP)}, {sr(S_W)}")
    a(f"s_lshl_b32 {sr(S_TMP)}, {sr(S_TMP)}, 18")
    a(f"s_lshl_b32 {sr(S_TMP2)}, {sr(S_H)}, 13")
    a(f"s_add_u32 {sr(S_TMP)}, {sr(S_TMP)}, {sr(S_TMP2)}")
    srd(R_O, S_WS, sr(S_TMP), 8192)
    a(f"v_lshlrev_b32 {vr(V_STO)}, 4, {vr(V_LANE)}")
    a(f"v_mov_b32 {vr(V_FLAGA)}, {FLAGS}")
    a(f"s_lshl_b32 {sr(S_TMP)}, {sr(S_W)}, 2")
    a(f"s_add_u32 {sr(S_TMP)}, {sr(S_TMP)}, {F_DONE}")
    a(f"v_mov_b32 {vr(V_DONEA)}, {sr(S_TMP)}")
    a(f"s_mov_b32 {sr(S_C)}, 0x{f2u(CSCALE):08x}")
    a(f"s_mov_b32 {sr(S_TH)}, 0x{f2u(THRESH):08x}")
    a(f"v_and_b32 {vr(V_T0)}, 31, {vr(V_LANE)}")
    a(f"v_lshrrev_b32 {vr(V_T1)}, 5, {vr(V_LANE)}")
    a(f"v_bfe_u32 {vr(V_T2)}, {vr(V_LANE)}, 1, 3")
    a(f"v_xor_b32 {vr(V_T2)}, {vr(V_T2)}, {vr(V_T1)}")
    a(f"v_lshlrev_b32 {vr(V_T2)}, 4, {vr(V_T2)}")
    a(f"v_lshl_add_u32 {vr(V_T2)}, {vr(V_T0)}, 7, {vr(V_T2)}")
    a(f"v_add_u32 {vr(XA)}, {sr(S_XS)}, {vr(V_T2)}")
    for s_ in range(1, 4):
        a(f"v_xor_b32 {vr(XA+s_)}, {s_<<5}, {vr(XA)}")
    a(f"v_and_b32 {vr(V_T2)}, 15, {vr(V_LANE)}")
    a(f"v_xor_b32 {vr(V_T3)}, {vr(V_T1)}, {vr(V_T2)}")
    a(f"v_lshlrev_b32 {vr(V_T3)}, 4, {vr(V_T3)}")
    a(f"v_lshl_add_u32 {vr(KA)}, {vr(V_T0)}, 8, {vr(V_T3)}")
    for s_ in range(1, 8):
        a(f"v_xor_b32 {vr(KA+s_)}, {s_<<5}, {vr(KA)}")
    a(f"v_lshrrev_b32 {vr(V_T3)}, 2, {vr(V_T2)}")
    a(f"v_bfe_u32 {vr(V_T4)}, {vr(V_LANE)}, 4, 1")
    VX0, VX1, VX2 = QF, QF+1, QF+2
    a(f"v_bfe_u32 {vr(VX0)}, {vr(V_LANE)}, 1, 1")
    a(f"v_lshl_add_u32 {vr(VX0)}, {vr(V_T4)}, 1, {vr(VX0)}")
    a(f"v_lshlrev_b32 {vr(VX0)}, 4, {vr(VX0)}")
    a(f"v_and_b32 {vr(VX1)}, 1, {vr(V_LANE)}")
    a(f"v_lshl_add_u32 {vr(VX0)}, {vr(VX1)}, 3, {vr(VX0)}")
    a(f"v_lshl_add_u32 {vr(VX0)}, {vr(V_T3)}, 6, {vr(VX0)}")
    a(f"v_lshl_add_u32 {vr(VX1)}, {vr(V_T1)}, 2, {vr(V_T3)}")
    a(f"v_lshl_add_u32 {vr(VX0)}, {vr(VX1)}, 8, {vr(VX0)}")
    a(f"v_add_u32 {vr(VA)}, 8192, {vr(VX0)}")
    for dt in range(1, 4):
        a(f"v_xor_b32 {vr(VA+dt)}, {dt<<6}, {vr(VA)}")
    a(f"v_and_b32 {vr(VX0)}, 1, {vr(V_LANE)}")
    a(f"v_lshl_add_u32 {vr(VX0)}, {vr(V_T4)}, 1, {vr(VX0)}")
    a(f"v_lshlrev_b32 {vr(VX0)}, 4, {vr(VX0)}")
    a(f"v_bfe_u32 {vr(VX1)}, {vr(V_LANE)}, 1, 1")
    a(f"v_lshl_add_u32 {vr(VX0)}, {vr(VX1)}, 3, {vr(VX0)}")
    a(f"v_lshl_add_u32 {vr(VX0)}, {vr(V_T3)}, 6, {vr(VX0)}")
    a(f"v_lshl_add_u32 {vr(VX1)}, {vr(V_T1)}, 3, {vr(V_T3)}")
    a(f"v_lshl_add_u32 {vr(VX2)}, {vr(VX1)}, 8, {vr(VX0)}")
    a(f"v_add_u32 {vr(WA)}, {WQ0}, {vr(VX2)}")
    for dt in range(1, 4):
        a(f"v_xor_b32 {vr(WA+dt)}, {dt<<6}, {vr(WA)}")
    for r in range(64):
        a(f"v_mov_b32 {vr(OA+r)}, 0")
    a(f"s_mov_b32 {sr(S_LAND)}, 0")
    stamp()
    a("s_barrier")
    stamp()

    def wait_landed(flag_off, need):
        Lok = a.new("lok"); Lp = a.new("lpoll")
        a(f"s_cmp_ge_u32 {sr(S_LAND)}, {need}")
        a(f"s_cbranch_scc1 {Lok}")
        a.label(Lp)
        a(f"ds_read_b32 {vr(V_FLAG)}, {vr(V_FLAGA)} offset:{flag_off-FLAGS}")
        a("s_waitcnt lgkmcnt(0)")
        a(f"v_readfirstlane_b32 {sr(S_LAND)}, {vr(V_FLAG)}")
        a(f"s_cmp_ge_u32 {sr(S_LAND)}, {need}")
        a(f"s_cbranch_scc1 {Lok}")
        a("s_sleep 1")
        a(f"s_branch {Lp}")
        a.label(Lok)
    def publish_done(val):
        a(f"v_mov_b32 {vr(V_T0)}, {val}")
        a("s_mov_b64 exec, 1")
        a(f"ds_write_b32 {vr(V_DONEA)}, {vr(V_T0)}")
        a("s_mov_b64 exec, -1")

    a.c("---- Q projection")
    AB = QF
    def reads_for(ks):
        n = 0
        c, ksp = ks >> 1, ks & 1
        if ks % 4 == 0:
            kc = ks >> 2
            a(f"s_waitcnt vmcnt({4 if kc < 7 else 0})")
            for s_ in range(4):
                a(f"ds_read_b128 {vr(XF+16*(kc&1)+4*s_,4)}, {vr(XA+s_)} offset:{(kc&1)*4096}")
            n += 4
        if ksp == 0:
            acc_begin()
            wait_landed(F_WQ, c+1)
            acc_end(88)
        for dt in range(4):
            for u in range(2):
                a(f"ds_read_b64_tr_b16 {vr(AB+16*(ks&1)+4*dt+2*u,2)}, {vr(WA+dt)} offset:{(c%6)*8192+ksp*4096+u*1024}")
        n += 8
        if ksp == 1:
            publish_done(c+1)
            n += 1
        return n
    reads_for(0)
    stamp()
    for ks in range(32):
        if ks + 1 < 32:
            n = reads_for(ks+1)
            a(f"s_waitcnt lgkmcnt({n})")
        else:
            a("s_waitcnt lgkmcnt(0)")
        kc = ks >> 2
        for dt in range(4):
            a(f"v_mfma_f32_32x32x16_bf16 {vr(OA+16*dt,16)}, {vr(AB+16*(ks&1)+4*dt,4)}, {vr(XF+16*(kc&1)+4*(ks&3),4)}, {vr(OA+16*dt,16)}")
        if ks % 4 == 0 and kc + 2 < 8:
            x_dma(kc + 2)
    a.nop(16)
    for r in range(64):
        a(f"v_mul_f32 {vr(OA+r)}, {sr(S_C)}, {vr(OA+r)}")
    for k in range(32):
        a(f"v_cvt_pk_bf16_f32 {vr(QF+k)}, {vr(OA+2*k)}, {vr(OA+2*k+1)}")
    for r in range(64):
        a(f"v_mov_b32 {vr(OA+r)}, 0")
    a(f"v_mov_b32 {vr(V_L0)}, 0")
    a(f"v_mov_b32 {vr(V_L1)}, 0")
    a(f"s_mov_b32 {sr(S_T)}, 0")
    a(f"s_mov_b32 {sr(S_LAND)}, 0")
    a(f"s_mov_b32 {sr(S_DONE)}, 17")

    def k_reads(j):
        for s_ in range(8):
            a(f"ds_read_b128 {vr(KF+4*s_,4)}, {vr(KA+s_)} offset:{j*SLOT}")
    def max_tree_ops(S):
        T = TMP
        return [
            f"v_max3_f32 {vr(T)}, {vr(S)}, {vr(S+1)}, {vr(S+2)}",
            f"v_max3_f32 {vr(T+1)}, {vr(S+3)}, {vr(S+4)}, {vr(S+5)}",
            f"v_max3_f32 {vr(T+2)}, {vr(S+6)}, {vr(S+7)}, {vr(S+8)}",
            f"v_max3_f32 {vr(T+3)}, {vr(S+9)}, {vr(S+10)}, {vr(S+11)}",
            f"v_max3_f32 {vr(T+4)}, {vr(S+12)}, {vr(S+13)}, {vr(S+14)}",
            f"v_max3_f32 {vr(T)}, {vr(T)}, {vr(T+1)}, {vr(S+15)}",
            f"v_max3_f32 {vr(T+2)}, {vr(T+2)}, {vr(T+3)}, {vr(T+4)}",
            f"v_max_f32 {vr(V_MX)}, {vr(T)}, {vr(T+2)}"]
    def rescale(S, first):
        T = TMP
        a(f"v_mov_b32 {vr(T)}, {vr(V_MX)}")
        a.nop(2)
        a(f"v_permlane32_swap_b32 {vr(T)}, {vr(V_MX)}")
        a.nop(2)
        if first:
            a(f"v_max_f32 {vr(T)}, {vr(T)}, {vr(V_MX)}")
            a(f"v_sub_f32 {vr(T+1)}, 0, {vr(T)}")
        else:
            a(f"v_max3_f32 {vr(T)}, {vr(T)}, {vr(V_MX)}, 0")
            a(f"v_sub_f32 {vr(T+1)}, {vr(NM)}, {vr(T)}")
        for r in range(16):
            a(f"v_sub_f32 {vr(S+r)}, {vr(S+r)}, {vr(T)}")
        for r in range(16):
            a(f"v_mov_b32 {vr(NM+r)}, {vr(T+1)}")
        if not first:
            a(f"v_sub_f32 {vr(T+2)}, 0, {vr(T)}")
            a(f"v_exp_f32 {vr(T+2)}, {vr(T+2)}")
            a.nop(1)
            a(f"v_mul_f32 {vr(V_L0)}, {vr(V_L0)}, {vr(T+2)}")
            a(f"v_mul_f32 {vr(V_L1)}, {vr(V_L1)}, {vr(T+2)}")
            for r in range(64):
                a(f"v_mul_f32 {vr(OA+r)}, {vr(OA+r)}, {vr(T+2)}")
    stamp()
    wait_landed(F_KV, 1)
    stamp()
    k_reads(0)
    a("s_waitcnt lgkmcnt(0)")
    for s_ in range(8):
        srcC = "0" if s_ == 0 else vr(SB0,16)
        a(f"v_mfma_f32_32x32x16_bf16 {vr(SB0,16)}, {vr(KF+4*s_,4)}, {vr(QF+4*s_,4)}, {srcC}")
    wait_landed(F_KV, 2)
    k_reads(1)
    a.nop(12)
    for op in max_tree_ops(SB0): a(op)
    rescale(SB0, True)

    rare_blocks = []
    def tile(j, has_next, has_next2, dyn):
        SBc, SBn = (SB0, SB1) if (j & 1) == 0 else (SB1, SB0)
        a.c(f"tile slot {j} next={has_next} next2={has_next2}")
        vreads = [(s2, dt, u) for s2 in range(2) for dt in range(4) for u in range(2)]
        if has_next:
            a("s_waitcnt lgkmcnt(0)")
        for i in range(8):
            if has_next:
                srcC = NM if i == 0 else SBn
                a(f"v_mfma_f32_32x32x16_bf16 {vr(SBn,16)}, {vr(KF+4*i,4)}, {vr(QF+4*i,4)}, {vr(srcC,16)}")
            for (s2, dt, u) in vreads[2*i:2*i+2]:
                a(f"ds_read_b64_tr_b16 {vr(VF+16*s2+4*dt+2*u,2)}, {vr(VA+dt)} offset:{j*SLOT+s2*4096+u*2048}")
            a(f"v_exp_f32 {vr(SBc+2*i)}, {vr(SBc+2*i)}")
            a(f"v_exp_f32 {vr(SBc+2*i+1)}, {vr(SBc+2*i+1)}")
            if i >= 1:
                k = i - 1
                a(f"v_cvt_pk_bf16_f32 {vr(PB+k)}, {vr(SBc+2*k)}, {vr(SBc+2*k+1)}")
                a(f"v_add_f32 {vr(V_L0)}, {vr(V_L0)}, {vr(SBc+2*k)}")
                a(f"v_add_f32 {vr(V_L1)}, {vr(V_L1)}, {vr(SBc+2*k+1)}")
        if has_next2:
            a(f"ds_read_b32 {vr(V_FLAG)}, {vr(V_FLAGA)} offset:{F_KV-FLAGS}")
        publish_done(sr(S_DONE))
        a(f"v_cvt_pk_bf16_f32 {vr(PB+7)}, {vr(SBc+14)}, {vr(SBc+15)}")
        a(f"v_add_f32 {vr(V_L0)}, {vr(V_L0)}, {vr(SBc+14)}")
        a(f"v_add_f32 {vr(V_L1)}, {vr(V_L1)}, {vr(SBc+15)}")
        a(f"s_add_u32 {sr(S_DONE)}, {sr(S_DONE)}, 1")
        if j == 3:
            for dt in range(4):
                a(f"v_xor_b32 {vr(VA+dt)}, 0x10000, {vr(VA+dt)}")
        if j == 2 and has_next2:
            for s_ in range(8):
                a(f"v_xor_b32 {vr(KA+s_)}, 0x10000, {vr(KA+s_)}")
        a("s_waitcnt lgkmcnt(0)")
        pv = [(s2, dt) for s2 in range(2) for dt in range(4)]
        def pvm(i):
            s2, dt = pv[i]
            a(f"v_mfma_f32_32x32x16_bf16 {vr(OA+16*dt,16)}, {vr(VF+16*s2+4*dt,4)}, {vr(PB+4*s2,4)}, {vr(OA+16*dt,16)}")
        pvm(0)
        Lnp = a.new("nopref"); Lj = a.new("join")
        if has_next2:
            a(f"v_readfirstlane_b32 {sr(S_LAND)}, {vr(V_FLAG)}")
            a(f"s_add_u32 {sr(S_TMP)}, {sr(S_T)}, 3")
            a(f"s_mov_b32 {sr(S_PREF)}, 0")
            a(f"s_cmp_ge_u32 {sr(S_LAND)}, {sr(S_TMP)}")
            a(f"s_cbranch_scc0 {Lnp}")
            k_reads((j+2) & 3)
            a(f"s_mov_b32 {sr(S_PREF)}, 1")
            a.label(Lnp)
        pvm(1); pvm(2); pvm(3)
        mt = max_tree_ops(SBn) if has_next else []
        for i in range(4, 8):
            pvm(i)
            for op in mt[2*(i-4):2*(i-4)+2]: a(op)
        a(f"s_add_u32 {sr(S_T)}, {sr(S_T)}, 1")
        if has_next:
            Lrare = a.new("rare"); Lback = a.new("back")
            a(f"v_cmp_lt_f32 vcc, {sr(S_TH)}, {vr(V_MX)}")
            a(f"s_cbranch_vccnz {Lrare}")
            a.label(Lback)
            rare_blocks.append((Lrare, Lback, SBn))
        if has_next2:
            Lnext = a.new("next")
            a(f"s_cmp_eq_u32 {sr(S_PREF)}, 1")
            a(f"s_cbranch_scc1 {Lnext}")
            a(f"s_add_u32 {sr(S_TMP)}, {sr(S_T)}, 2")
            acc_begin()
            wait_landed(F_KV, sr(S_TMP))
            acc_end(89)
            k_reads((j+2) & 3)
            a.label(Lnext)
    a.c("---- attention loop")
    a.label("L1_loop")
    for j in range(4):
        tile(j, True, True, True)
    a(f"s_cmp_lt_u32 {sr(S_T)}, 28")
    a("s_cbranch_scc1 L1_loop")
    tile(0, True, True, False)
    tile(1, True, True, False)
    tile(2, True, False, False)
    tile(3, False, False, False)
    a.label("L1_epi")
    stamp()
    T = TMP
    a(f"v_add_f32 {vr(V_L0)}, {vr(V_L0)}, {vr(V_L1)}")
    a(f"v_mov_b32 {vr(T)}, {vr(V_L0)}")
    a.nop(2)
    a(f"v_permlane32_swap_b32 {vr(T)}, {vr(V_L0)}")
    a.nop(2)
    a(f"v_add_f32 {vr(T)}, {vr(T)}, {vr(V_L0)}")
    a(f"v_rcp_f32 {vr(T)}, {vr(T)}")
    a.nop(12)
    for r in range(64):
        a(f"v_mul_f32 {vr(OA+r)}, {vr(OA+r)}, {vr(T)}")
    for k in range(32):
        a(f"v_cvt_pk_bf16_f32 {vr(KF+k)}, {vr(OA+2*k)}, {vr(OA+2*k+1)}")
    for f in range(8):
        so = "0" if f < 4 else sr(S_SOFF)
        if f == 4:
            a(f"s_mov_b32 {sr(S_SOFF)}, 4096")
        a(f"buffer_store_dwordx4 {vr(KF+4*f,4)}, {vr(V_STO)}, {sr(R_O,4)}, {so} offen offset:{(f&3)*1024}{STF}")
    if PROF:
        a("s_waitcnt vmcnt(0)")
    stamp()
    prof_store()
    a("s_endpgm")
    stamp_n[0] = 1
    for (Lrare, Lback, S) in rare_blocks:
        a.label(Lrare)
        a.nop(16)
        rescale(S, False)
        a(f"s_branch {Lback}")

    a.label("L1_producer")
    a("s_setprio 3")
    PV_K, PV_V, PV_WQ, PV_WO = 8, 12, 13, 14
    PV_DA, PV_D, PV_T0, PV_T1, PV_T2, PV_FA = 15, 16, 17, 18, 19, 20
    PV_TA = 21
    a(f"s_lshl_b32 {sr(S_TMP)}, {sr(S_H)}, 8")
    a(f"s_sub_u32 {sr(S_TMP2)}, 4194304, {sr(S_TMP)}")
    srd(R_WQ, S_WQ, sr(S_TMP), sr(S_TMP2))
    a(f"v_lshrrev_b32 {vr(PV_T0)}, 4, v2")
    a(f"v_and_b32 {vr(PV_T1)}, 15, v2")
    a(f"v_lshlrev_b32 {vr(PV_T2)}, 2, {vr(PV_T0)}")
    a(f"v_xor_b32 {vr(PV_T2)}, {vr(PV_T2)}, {vr(PV_T1)}")
    a(f"v_lshlrev_b32 {vr(PV_T2)}, 4, {vr(PV_T2)}")
    a(f"v_lshl_add_u32 {vr(PV_V)}, {vr(PV_T0)}, 8, {vr(PV_T2)}")
    a(f"v_lshl_add_u32 {vr(PV_WQ)}, {vr(PV_T0)}, 13, {vr(PV_T2)}")

    issued = []
    published = {"wq": 0, "kv": 0}
    landed_upto = [0]
    ntq = " nt" if opts.get("nt_wq") else ""
    def issue_wq(c):
        loc = wq_loc(c)
        for i in range(8):
            a(f"s_mov_b32 m0, {loc + i*1024}")
            a(f"s_mov_b32 {sr(S_SOFF)}, {(c*32 + 4*i)*8192}")
            a(f"buffer_load_dwordx4 {vr(PV_WQ)}, {sr(R_WQ,4)}, {sr(S_SOFF)} offen{ntq} lds")
        issued.append(("wq", c, 8))
    stamp()
    for c in range(6):
        issue_wq(c)
    stamp()
    a(f"s_lshl_b32 {sr(S_TMP)}, s2, 18")
    srd(R_K, S_K, sr(S_TMP), 262144)
    srd(R_V, S_V, sr(S_TMP), 262144)
    a(f"s_lshl_b32 {sr(S_TMP)}, {sr(S_H)}, 17")
    a(f"s_lshl_b32 {sr(S_TMP2)}, {sr(S_B)}, 7")
    a(f"s_add_u32 {sr(S_TMP)}, {sr(S_TMP)}, {sr(S_TMP2)}")
    a(f"s_sub_u32 {sr(S_TMP2)}, 131072, {sr(S_TMP2)}")
    srd(R_WO, S_WO, sr(S_TMP), sr(S_TMP2))
    a(f"s_lshl_b32 {sr(S_TMP)}, {sr(S_B)}, 6")
    a(f"s_add_u32 {sr(S_TMP)}, {sr(S_TMP)}, {sr(S_H)}")
    a(f"s_lshl_b32 {sr(S_TMP)}, {sr(S_TMP)}, 13")
    a(f"s_add_u32 {sr(S_TMP)}, {sr(S_TMP)}, {WS_WOT}")
    srd(R_WT, S_WS, sr(S_TMP), 262144 + 8192)
    for i in range(4):
        a(f"v_add_u32 {vr(PV_T2)}, {4*i}, {vr(PV_T0)}")
        a(f"v_xor_b32 {vr(PV_T2)}, {vr(PV_T2)}, {vr(PV_T1)}")
        a(f"v_lshlrev_b32 {vr(PV_T2)}, 4, {vr(PV_T2)}")
        a(f"v_lshl_add_u32 {vr(PV_K+i)}, {vr(PV_T0)}, 8, {vr(PV_T2)}")
    a(f"v_lshrrev_b32 {vr(PV_T0)}, 3, v2")
    a(f"v_and_b32 {vr(PV_T1)}, 7, v2")
    a(f"v_lshlrev_b32 {vr(PV_T1)}, 4, {vr(PV_T1)}")
    a(f"v_lshl_add_u32 {vr(PV_WO)}, {vr(PV_T0)}, 10, {vr(PV_T1)}")
    a(f"v_and_b32 {vr(PV_T0)}, 7, v2")
    a(f"v_lshlrev_b32 {vr(PV_T0)}, 2, {vr(PV_T0)}")
    a(f"v_add_u32 {vr(PV_DA)}, {F_DONE}, {vr(PV_T0)}")
    a(f"v_mov_b32 {vr(PV_FA)}, {FLAGS}")
    a(f"v_lshrrev_b32 {vr(PV_T0)}, 5, v2")
    a(f"v_bfe_u32 {vr(PV_T1)}, v2, 2, 2")
    a(f"v_lshl_add_u32 {vr(PV_T0)}, {vr(PV_T0)}, 2, {vr(PV_T1)}")
    a(f"v_lshlrev_b32 {vr(PV_T0)}, 7, {vr(PV_T0)}")
    a(f"v_bfe_u32 {vr(PV_T1)}, v2, 4, 1")
    a(f"v_lshl_add_u32 {vr(PV_T0)}, {vr(PV_T1)}, 5, {vr(PV_T0)}")
    a(f"v_and_b32 {vr(PV_T1)}, 3, v2")
    a(f"v_lshl_add_u32 {vr(PV_T0)}, {vr(PV_T1)}, 3, {vr(PV_T0)}")
    a(f"v_add_u32 {vr(PV_TA)}, {WO_STAGE}, {vr(PV_T0)}")
    a(f"v_lshlrev_b32 {vr(PV_T0)}, 2, v2")
    a(f"v_add_u32 {vr(PV_T0)}, {FLAGS}, {vr(PV_T0)}")
    a(f"v_mov_b32 {vr(PV_T1)}, 0")
    a(f"v_cmp_eq_u32 vcc, 15, v2")
    a(f"v_mov_b32 {vr(PV_T2)}, 0x7fffffff")
    a("s_nop 1")
    a(f"v_cndmask_b32 {vr(PV_T1)}, {vr(PV_T1)}, {vr(PV_T2)}, vcc")
    a("s_mov_b64 exec, 0xffff")
    a(f"ds_write_b32 {vr(PV_T0)}, {vr(PV_T1)}")
    a("s_mov_b64 exec, -1")
    a("s_waitcnt lgkmcnt(0)")
    a("s_barrier")

    def issue_kv(t):
        base = (t & 7) * SLOT
        for half in range(2):
            for q in range(2):
                a(f"s_mov_b32 m0, {base + half*8192 + q*4096}")
                a(f"s_mov_b32 {sr(S_SOFF)}, {t*8192 + q*4096}")
                for i in range(4):
                    vo = PV_K + i if half == 0 else PV_V
                    R = R_K if half == 0 else R_V
                    a(f"buffer_load_dwordx4 {vr(vo)}, {sr(R,4)}, {sr(S_SOFF)} offen offset:{i*1024} nt lds")
        issued.append(("kv", t, 16))
    def issue_wo():
        for i in range(16):
            a(f"s_mov_b32 m0, {WO_STAGE + i*1024}")
            a(f"s_mov_b32 {sr(S_SOFF)}, {i*8*1024}")
            a(f"buffer_load_dwordx4 {vr(PV_WO)}, {sr(R_WO,4)}, {sr(S_SOFF)} offen lds")
        issued.append(("wo", 0, 16))
    pending_wo = [False]
    def settle(cap):
        tot = 0
        n = len(issued)
        k = n
        while k > landed_upto[0] and tot + issued[k-1][2] <= cap:
            tot += issued[k-1][2]; k -= 1
        if k <= landed_upto[0]:
            return
        a(f"s_waitcnt vmcnt({tot})")
        newwq, newkv = published["wq"], published["kv"]
        for g in issued[landed_upto[0]:k]:
            if g[0] == "wq": newwq = g[1] + 1
            if g[0] == "kv": newkv = g[1] + 1
            if g[0] == "wo": pending_wo[0] = True
        landed_upto[0] = k
        if newwq != published["wq"] or newkv != published["kv"]:
            a("s_mov_b64 exec, 1")
            if newwq != published["wq"]:
                a(f"v_mov_b32 {vr(PV_T0)}, {newwq}")
                a(f"ds_write_b32 {vr(PV_FA)}, {vr(PV_T0)} offset:{F_WQ-FLAGS}")
                published["wq"] = newwq
            if newkv != published["kv"]:
                a(f"v_mov_b32 {vr(PV_T1)}, {newkv}")
                a(f"ds_write_b32 {vr(PV_FA)}, {vr(PV_T1)} offset:{F_KV-FLAGS}")
                published["kv"] = newkv
            a("s_mov_b64 exec, -1")
        if pending_wo[0]:
            pending_wo[0] = False
            do_wo_transpose()
    def settle_one():
        tot = sum(g[2] for g in issued[landed_upto[0]+1:])
        settle(tot)
    def do_wo_transpose():
        WB = 32
        for nt in range(2):
            for f in range(8):
                dt, u = f >> 1, f & 1
                for up in range(2):
                    off = (32*dt + 16*u + 8*up) * 128 + 64*nt
                    a(f"ds_read_b64_tr_b16 {vr(WB + (nt*8+f)*4 + 2*up, 2)}, {vr(PV_TA)} offset:{off}")
        a("s_waitcnt lgkmcnt(0)")
        a(f"v_lshlrev_b32 {vr(PV_T2)}, 4, v2")
        for nt in range(2):
            for f in range(8):
                a(f"s_mov_b32 {sr(S_SOFF)}, {nt*262144 + (f>>2)*4096}")
                a(f"buffer_store_dwordx4 {vr(WB + (nt*8+f)*4, 4)}, {vr(PV_T2)}, {sr(R_WT,4)}, {sr(S_SOFF)} offen offset:{(f&3)*1024}{STF}")
        issued.append(("st", 0, 16))
    def wait_done(need):
        def ok():
            if need <= 16: return published["wq"] >= need
            return published["wq"] == 16 and published["kv"] >= need - 16
        while not ok():
            settle_one()
        Lp = a.new("pw"); Lok = a.new("pok")
        acc_begin()
        a.label(Lp)
        a(f"ds_read_b32 {vr(PV_D)}, {vr(PV_DA)}")
        a("s_waitcnt lgkmcnt(0)")
        a(f"v_cmp_gt_u32 vcc, {need}, {vr(PV_D)}")
        a(f"s_cbranch_vccz {Lok}")
        a("s_sleep 2")
        a(f"s_branch {Lp}")
        a.label(Lok)
        acc_end(88)
    CAP = opts.get("cap", 32)
    order = opts.get("order", 0)
    if order == 0:
        for c in range(3):
            settle_one()
        issue_kv(0)
        for c in range(3):
            settle_one()
        kvn = 1
        kv_after = (7, 9)
    else:
        for c in range(6):
            settle_one()
        kvn = 0
        kv_after = [(9, 12, 15), (11, 13, 15), (13, 14, 15)][order-1]
    for c in range(6, 16):
        wait_done(c - 5)
        issue_wq(c)
        if c in kv_after:
            issue_kv(kvn); kvn += 1
        settle(24)
    for t in range(3, 32):
        need = 16 if t <= 7 else t + 9
        wait_done(need)
        issue_kv(t); settle(CAP)
        if t in (3, 8, 16, 24, 31): stamp()
        if t == 12:
            issue_wo(); settle(CAP)
    settle(16)
    settle(0)
    a("s_waitcnt vmcnt(0) lgkmcnt(0)")
    stamp()
    prof_store()
    a.label("L1_done")
    a("s_endpgm")

def gen_k2(a, opts):
    S_WS, S_OUT = 4, 6
    R_O, R_W, R_OUT = 8, 12, 16
    S_W, S_QP, S_NP, S_T, S_T2, S_SO = 20, 21, 22, 23, 24, 25
    a.label(K2)
    a("s_cmp_ge_u32 s2, 224")
    a("s_cbranch_scc1 L2_done")
    a("s_load_dwordx2 s[4:5], s[0:1], 56")
    a("s_load_dwordx2 s[6:7], s[0:1], 40")
    a("v_lshrrev_b32 v1, 6, v0")
    a("v_and_b32 v2, 63, v0")
    a(f"v_readfirstlane_b32 {sr(S_W)}, v1")
    a(f"s_and_b32 {sr(S_T)}, s2, 1")
    a(f"s_lshl_b32 {sr(S_T)}, {sr(S_T)}, 2")
    a(f"s_lshr_b32 {sr(S_T2)}, s2, 3")
    a(f"s_and_b32 {sr(S_NP)}, {sr(S_T2)}, 3")
    a(f"s_add_u32 {sr(S_NP)}, {sr(S_NP)}, {sr(S_T)}")
    a(f"s_lshr_b32 {sr(S_T2)}, {sr(S_T2)}, 2")
    a(f"s_bfe_u32 {sr(S_T)}, s2, 0x20001")
    a(f"s_mul_i32 {sr(S_T)}, {sr(S_T)}, 7")
    a(f"s_add_u32 {sr(S_QP)}, {sr(S_T)}, {sr(S_T2)}")
    a("s_waitcnt lgkmcnt(0)")
    def srd(R, P, off_sreg, nrec):
        a(f"s_add_u32 {sr(R)}, {sr(P)}, {off_sreg}")
        a(f"s_addc_u32 {sr(R+1)}, {sr(P+1)}, 0")
        a(f"s_and_b32 {sr(R+1)}, {sr(R+1)}, 0xffff")
        a(f"s_mov_b32 {sr(R+2)}, {nrec}")
        a(f"s_mov_b32 {sr(R+3)}, 0x00020000")
    a(f"s_lshl_b32 {sr(S_T)}, {sr(S_QP)}, 19")
    srd(R_O, S_WS, sr(S_T), 524288)
    a(f"s_lshl_b32 {sr(S_T)}, {sr(S_NP)}, 19")
    a(f"s_add_u32 {sr(S_T)}, {sr(S_T)}, {WS_WOT}")
    srd(R_W, S_WS, sr(S_T), 524288)
    a(f"s_lshl_b32 {sr(S_T)}, {sr(S_QP)}, 16")
    a(f"s_lshl_b32 {sr(S_T2)}, {sr(S_NP)}, 7")
    a(f"s_add_u32 {sr(S_T)}, {sr(S_T)}, {sr(S_T2)}")
    a(f"s_sub_u32 {sr(S_T2)}, 65536, {sr(S_T2)}")
    srd(R_OUT, S_OUT, sr(S_T), sr(S_T2))
    V_LO, V_HI = 3, 4
    a(f"s_lshl_b32 {sr(S_T)}, {sr(S_W)}, 15")
    a(f"v_lshlrev_b32 {vr(V_LO)}, 4, v2")
    a(f"v_add_u32 {vr(V_LO)}, {sr(S_T)}, {vr(V_LO)}")
    a(f"v_add_u32 {vr(V_HI)}, 0x40000, {vr(V_LO)}")
    PROF = opts.get("prof", 0)
    pst = [0]
    def stamp2():
        if not PROF: return
        k = pst[0]; pst[0] += 1
        a(f"s_memrealtime s[{40+2*k}:{41+2*k}]")
    stamp2()
    PD = opts.get("pd", 8)
    ACC = 16
    BUF = 80
    def loads(ks):
        b = BUF + (ks % PD) * 16
        a(f"s_mov_b32 {sr(S_SO)}, {(ks>>2)*4096}")
        o = (ks & 3) * 1024
        a(f"buffer_load_dwordx4 {vr(b,4)}, {vr(V_LO)}, {sr(R_W,4)}, {sr(S_SO)} offen offset:{o}")
        a(f"buffer_load_dwordx4 {vr(b+4,4)}, {vr(V_HI)}, {sr(R_W,4)}, {sr(S_SO)} offen offset:{o}")
        a(f"buffer_load_dwordx4 {vr(b+8,4)}, {vr(V_LO)}, {sr(R_O,4)}, {sr(S_SO)} offen offset:{o}")
        a(f"buffer_load_dwordx4 {vr(b+12,4)}, {vr(V_HI)}, {sr(R_O,4)}, {sr(S_SO)} offen offset:{o}")
    for ks in range(PD):
        loads(ks)
    for r in range(64):
        a(f"v_mov_b32 {vr(ACC+r)}, 0")
    for ks in range(32):
        rem = min(PD - 1, 31 - ks)
        a(f"s_waitcnt vmcnt({4*rem})")
        if ks in (0, 8, 16, 24): stamp2()
        b = BUF + (ks % PD) * 16
        for qi in range(2):
            for ni in range(2):
                t = qi*2 + ni
                a(f"v_mfma_f32_32x32x16_bf16 {vr(ACC+16*t,16)}, {vr(b+4*ni,4)}, {vr(b+8+4*qi,4)}, {vr(ACC+16*t,16)}")
        if ks + PD < 32:
            loads(ks + PD)
    a.nop(16)
    stamp2()
    V_A = 5
    a(f"s_lshl_b32 {sr(S_T)}, {sr(S_W)}, 14")
    a(f"v_lshlrev_b32 {vr(V_A)}, 4, v2")
    a(f"v_add_u32 {vr(6)}, {sr(S_T)}, {vr(V_A)}")
    for t in range(4):
        for rq in range(4):
            a(f"ds_write_b128 v6, {vr(ACC+16*t+4*rq,4)} offset:{t*4096+rq*1024}")
    a("s_waitcnt lgkmcnt(0)")
    a("s_barrier")
    a(f"s_lshl_b32 {sr(S_T)}, {sr(S_W)}, 11")
    a(f"v_add_u32 {vr(6)}, {sr(S_T)}, {vr(V_A)}")
    a(f"v_add_u32 {vr(7)}, 0x10000, {vr(6)}")
    RB = 80
    for w in range(8):
        for e in range(2):
            va = 6 if w < 4 else 7
            a(f"ds_read_b128 {vr(RB + (w*2+e)*4, 4)}, v{va} offset:{(w&3)*16384 + e*1024}")
    a("s_waitcnt lgkmcnt(0)")
    for e in range(2):
        for r in range(4):
            for w in range(1, 8):
                a(f"v_add_f32 {vr(RB+e*4+r)}, {vr(RB+e*4+r)}, {vr(RB+(w*2+e)*4+r)}")
    for e in range(2):
        a(f"v_cvt_pk_bf16_f32 {vr(16+2*e)}, {vr(RB+e*4)}, {vr(RB+e*4+1)}")
        a(f"v_cvt_pk_bf16_f32 {vr(17+2*e)}, {vr(RB+e*4+2)}, {vr(RB+e*4+3)}")
    a(f"s_lshr_b32 {sr(S_T)}, {sr(S_W)}, 2")
    a(f"s_lshl_b32 {sr(S_T)}, {sr(S_T)}, 15")
    a(f"s_and_b32 {sr(S_T2)}, {sr(S_W)}, 3")
    a(f"s_lshl_b32 {sr(S_T2)}, {sr(S_T2)}, 5")
    a(f"s_add_u32 {sr(S_T)}, {sr(S_T)}, {sr(S_T2)}")
    a("v_and_b32 v8, 31, v2")
    a("v_lshlrev_b32 v8, 10, v8")
    a("v_lshrrev_b32 v9, 5, v2")
    a("v_lshl_add_u32 v8, v9, 3, v8")
    a(f"v_add_u32 v8, {sr(S_T)}, v8")
    a(f"buffer_store_dwordx2 v[16:17], v8, {sr(R_OUT,4)}, 0 offen")
    a(f"buffer_store_dwordx2 v[18:19], v8, {sr(R_OUT,4)}, 0 offen offset:16")
    if PROF:
        a("s_waitcnt vmcnt(0)")
        stamp2()
        a("s_waitcnt lgkmcnt(0)")
        a(f"s_lshl_b32 {sr(S_T)}, s2, 3"); a(f"s_add_u32 {sr(S_T)}, {sr(S_T)}, {sr(S_W)}"); a(f"s_lshl_b32 {sr(S_T)}, {sr(S_T)}, 6")
        a(f"s_add_u32 {sr(S_T)}, {sr(S_T)}, {40<<20}")
        srd(28, S_WS, sr(S_T), 64)
        a("v_mov_b32 v1, 0")
        for k in range(pst[0]):
            a(f"v_mov_b32 v0, s{40+2*k}")
            a(f"buffer_store_dword v0, v1, s[28:31], 0 offen offset:{4*k}")
    a.label("L2_done")
    a("s_endpgm")

HEADER = open("standalone__mha_block_cached__near_ridge.s.ref").read().split("; Override launch")[0]

def desc(name, vgpr, sgpr):
    return f""".amdhsa_kernel {name}
  .amdhsa_next_free_vgpr {vgpr}
  .amdhsa_next_free_sgpr {sgpr}
  .amdhsa_accum_offset {(vgpr+3)//4*4}
  .amdhsa_group_segment_fixed_size 0
  .amdhsa_kernarg_size 64
  .amdhsa_user_sgpr_count 2
  .amdhsa_user_sgpr_kernarg_segment_ptr 1
  .amdhsa_system_sgpr_workgroup_id_x 1
.end_amdhsa_kernel
"""

def build(opts):
    out = HEADER
    only = opts.get("only", 0)
    if only != 2:
        out += f"; @launch kernel={K1} grid=(256,1,1) block=(512,1,1) lds={LDS1}\n"
    if only != 1:
        out += f"; @launch kernel={K2} grid=(224,1,1) block=(512,1,1) lds=131072\n"
    out += '.amdgcn_target "amdgcn-amd-amdhsa--gfx950"\n.text\n'
    a = Asm()
    out += f".globl {K1}\n.p2align 8\n.type {K1},@function\n"
    gen_k1(a, opts)
    out += a.text()
    a2 = Asm(); a2.uid = 100000
    out += f".globl {K2}\n.p2align 8\n.type {K2},@function\n"
    gen_k2(a2, opts)
    out += a2.text()
    out += '.section .rodata,"a"\n.p2align 6\n'
    out += desc(K1, 256, 102 if opts.get("prof") else 64)
    out += ".p2align 6\n"
    out += desc(K2, 208, 64 if opts.get("prof") else 32)
    return out

if __name__ == "__main__":
    opts = {}
    path = "standalone__mha_block_cached__near_ridge.s"
    for arg in sys.argv[1:]:
        if arg.startswith("-o"):
            path = arg[2:]
        else:
            k, v = arg.split("=")
            opts[k] = int(v)
    open(path, "w").write(build(opts))
    print("wrote", path)
```

```python
import sys, struct

NAME = "standalone__mha_block_cached__near_ridge"
K1 = "attn_kernel"
K2 = NAME + "_kernel"

def f2u(x):
    return struct.unpack("<I", struct.pack("<f", x))[0]

class Asm:
    def __init__(self):
        self.L = []
        self.uid = 0
    def __call__(self, s):
        self.L.append("    " + s)
    def label(self, s):
        self.L.append(s + ":")
    def c(self, s):
        self.L.append("    ; " + s)
    def new(self, base):
        self.uid += 1
        return f"L_{base}_{self.uid}"
    def nop(self, n):
        while n > 0:
            k = min(n, 16)
            self(f"s_nop {k-1}")
            n -= k
    def text(self):
        return "\n".join(self.L) + "\n"

def vr(a, n=1):
    return f"v{a}" if n == 1 else f"v[{a}:{a+n-1}]"
def sr(a, n=1):
    return f"s{a}" if n == 1 else f"s[{a}:{a+n-1}]"

SLOT = 16384
FLAGS = 155648
F_WQ = FLAGS + 0
F_KV = FLAGS + 4
F_ODONE = FLAGS + 8
F_WOOK = FLAGS + 12
F_GO = FLAGS + 16
F_QRDY = FLAGS + 20
F_DONE = FLAGS + 32
LDS1 = 155904
XS0 = 49152
WQ0 = 106496
def wq_loc(c):
    return WQ0 + (c % 6) * 8192
WO_STAGE = 131072
WS_WOT = 16 << 20
CSCALE = 1.4426950408889634 * (128 ** -0.5)
THRESH = 8.0

def gen_k1(a, opts):
    S_X, S_K, S_V, S_WQ, S_WO, S_WS = 4, 6, 8, 10, 12, 14
    R_K, R_V, R_WQ, R_X, R_O, R_WO, R_WT = 16, 20, 24, 28, 32, 36, 40
    S_B, S_H, S_W = 44, 45, 46
    S_T, S_LAND, S_PREF, S_DONE = 47, 48, 49, 50
    S_TMP, S_TMP2, S_TMP3 = 51, 52, 53
    S_C, S_TH = 54, 55
    S_SOFF, S_XS = 56, 57
    FUSED = opts.get("fused", 0)
    a.label(K2 if FUSED else K1)
    a("s_cmp_ge_u32 s2, 256")
    a("s_cbranch_scc1 L1_done")
    a(f"s_load_dwordx4 s[4:7], s[0:1], 0")
    a(f"s_load_dwordx4 s[8:11], s[0:1], 16")
    a(f"s_load_dwordx2 s[12:13], s[0:1], 32")
    a(f"s_load_dwordx2 s[14:15], s[0:1], 56")
    S_OUTP, S_DBG = 60, 62
    if FUSED:
        a(f"s_load_dwordx4 s[{S_OUTP}:{S_OUTP+3}], s[0:1], 40")
    a(f"v_lshrrev_b32 v1, 6, v0")
    a(f"v_and_b32 v2, 63, v0")
    a(f"v_readfirstlane_b32 {sr(S_W)}, v1")
    a(f"s_lshr_b32 {sr(S_B)}, s2, 5")
    a(f"s_and_b32 {sr(S_H)}, s2, 31")
    a("s_waitcnt lgkmcnt(0)")
    def srd(R, P, off_sreg, nrec):
        a(f"s_add_u32 {sr(R)}, {sr(P)}, {off_sreg}")
        a(f"s_addc_u32 {sr(R+1)}, {sr(P+1)}, 0")
        a(f"s_and_b32 {sr(R+1)}, {sr(R+1)}, 0xffff")
        a(f"s_mov_b32 {sr(R+2)}, {nrec}")
        a(f"s_mov_b32 {sr(R+3)}, 0x00020000")
    PROF = opts.get("prof", 0)
    STF = ["", " sc1", " nt", " sc0 sc1", " sc1 nt"][opts.get("stf", 0)]
    R_PR = 96
    stamp_n = [0]
    def stamp():
        if not PROF: return
        k = stamp_n[0]; stamp_n[0] += 1
        assert k < 12
        a(f"s_memtime s[{64+2*k}:{65+2*k}]")
    def acc_begin():
        if not PROF: return
        a("s_memtime s[90:91]"); a("s_waitcnt lgkmcnt(0)")
    def acc_end(reg):
        if not PROF: return
        a("s_memtime s[92:93]"); a("s_waitcnt lgkmcnt(0)")
        a("s_sub_u32 s92, s92, s90"); a(f"s_add_u32 s{reg}, s{reg}, s92")
    def prof_store():
        if not PROF: return
        a("s_waitcnt lgkmcnt(0)")
        a(f"s_lshl_b32 {sr(S_TMP)}, s2, 3"); a(f"s_add_u32 {sr(S_TMP)}, {sr(S_TMP)}, {sr(S_W)}"); a(f"s_lshl_b32 {sr(S_TMP)}, {sr(S_TMP)}, 7")
        a(f"s_add_u32 {sr(S_TMP)}, {sr(S_TMP)}, {32<<20}")
        srd(R_PR, S_WS, sr(S_TMP), 128)
        a("v_mov_b32 v1, 0")
        for k in range(12):
            a(f"v_mov_b32 v0, s{64+2*k}")
            a(f"buffer_store_dword v0, v1, s[96:99], 0 offen offset:{4*k}")
        for k in range(2):
            a(f"v_mov_b32 v0, s{88+k}")
            a(f"buffer_store_dword v0, v1, s[96:99], 0 offen offset:{48+4*k}")
        a("s_memrealtime s[92:93]"); a("s_waitcnt lgkmcnt(0)")
        a("v_mov_b32 v0, s94"); a("buffer_store_dword v0, v1, s[96:99], 0 offen offset:56")
        a("v_mov_b32 v0, s92"); a("buffer_store_dword v0, v1, s[96:99], 0 offen offset:60")
    if PROF:
        for k in range(64, 90): a(f"s_mov_b32 s{k}, 0")
        a("s_memrealtime s[94:95]")
    stamp()
    a(f"s_cmp_eq_u32 {sr(S_W)}, 7")
    a("s_cbranch_scc1 L1_producer")

    V_LANE, V_FLAGA, V_FLAG, V_T0, V_T1, V_T2, V_T3, V_T4 = 2, 3, 4, 5, 6, 7, 8, 9
    V_DONEA, V_WQB, V_L0, V_L1, V_MX = 10, 11, 12, 13, 14
    V_STO = 15
    KA, VA, WA = 16, 24, 28
    QF, OA, SB0, NM, PB, TMP, KF, VF, SB1 = 32, 64, 128, 144, 160, 168, 176, 208, 240
    QP2 = opts.get("qp2", 0)
    XF = 128
    XFB = [160, 240]
    OB2 = 176
    XA, XV = (12, 0) if QP2 else (160, 164)
    if opts.get("prio", 0) == 1:
        a(f"s_cmp_lt_u32 {sr(S_W)}, 4")
        a("s_cbranch_scc1 L1_noprio")
        a("s_setprio 1")
        a.label("L1_noprio")
    a.c("---- consumer: x SRD (per wave rows) and DMA of first two x chunks")
    a(f"s_mul_i32 {sr(S_TMP)}, {sr(S_B)}, 229376")
    a(f"s_lshl_b32 {sr(S_TMP2)}, {sr(S_W)}, 15")
    a(f"s_add_u32 {sr(S_TMP)}, {sr(S_TMP)}, {sr(S_TMP2)}")
    if QP2:
        a(f"s_sub_u32 {sr(S_TMP2)}, 229376, {sr(S_TMP2)}")
        srd(R_X, S_X, sr(S_TMP), sr(S_TMP2))
        a(f"s_and_b32 {sr(S_XS)}, {sr(S_W)}, 3")
        a(f"s_lshl_b32 {sr(S_XS)}, {sr(S_XS)}, 14")
    else:
        srd(R_X, S_X, sr(S_TMP), 32768)
        a(f"s_lshl_b32 {sr(S_XS)}, {sr(S_W)}, 13")
    a(f"s_add_u32 {sr(S_XS)}, {sr(S_XS)}, {XS0}")
    a(f"v_lshrrev_b32 {vr(V_T0)}, 4, {vr(V_LANE)}")
    a(f"v_and_b32 {vr(V_T1)}, 7, {vr(V_LANE)}")
    a(f"v_xor_b32 {vr(V_T1)}, {vr(V_T1)}, {vr(V_T0)}")
    a(f"v_lshlrev_b32 {vr(V_T1)}, 4, {vr(V_T1)}")
    a(f"v_lshrrev_b32 {vr(V_T0)}, 3, {vr(V_LANE)}")
    a(f"v_lshl_add_u32 {vr(XV)}, {vr(V_T0)}, 10, {vr(V_T1)}")
    a(f"v_xor_b32 {vr(XV+1)}, 64, {vr(XV)}")
    def x_dma(kc, nt=1):
        for tl in range(nt):
            for i in range(4):
                a(f"s_add_u32 m0, {sr(S_XS)}, {tl*8192 + (kc&1)*4096 + i*1024}")
                a(f"s_mov_b32 {sr(S_SOFF)}, {tl*131072 + kc*128 + i*8192}")
                a(f"buffer_load_dwordx4 {vr(XV+(i&1))}, {sr(R_X,4)}, {sr(S_SOFF)} offen lds")
    if QP2:
        a(f"s_cmp_gt_u32 {sr(S_W)}, 3")
        a("s_cbranch_scc1 L1_xdone")
        a(f"s_cmp_eq_u32 {sr(S_W)}, 3")
        a("s_cbranch_scc1 L1_x1")
        x_dma(0, 2); x_dma(1, 2)
        a("s_branch L1_xdone")
        a.label("L1_x1")
        x_dma(0); x_dma(1)
        a.label("L1_xdone")
    else:
        x_dma(0); x_dma(1)
    stamp()
    a(f"s_mul_i32 {sr(S_TMP)}, {sr(S_B)}, 7")
    a(f"s_add_u32 {sr(S_TMP)}, {sr(S_TMP)}, {sr(S_W)}")
    a(f"s_lshl_b32 {sr(S_TMP)}, {sr(S_TMP)}, 18")
    a(f"s_lshl_b32 {sr(S_TMP2)}, {sr(S_H)}, 13")
    a(f"s_add_u32 {sr(S_TMP)}, {sr(S_TMP)}, {sr(S_TMP2)}")
    srd(R_O, S_WS, sr(S_TMP), 8192)
    a(f"v_mov_b32 {vr(V_FLAGA)}, {FLAGS}")
    a(f"s_lshl_b32 {sr(S_TMP)}, {sr(S_W)}, 2")
    a(f"s_add_u32 {sr(S_TMP)}, {sr(S_TMP)}, {F_DONE}")
    a(f"v_mov_b32 {vr(V_DONEA)}, {sr(S_TMP)}")
    DYNP = opts.get("dynp", 0)
    V_PARTA = V_WQB
    a(f"v_xor_b32 {vr(V_PARTA)}, 16, {vr(V_DONEA)}")
    a(f"s_mov_b32 {sr(S_C)}, 0x{f2u(CSCALE):08x}")
    a(f"s_mov_b32 {sr(S_TH)}, 0x{f2u(THRESH):08x}")
    a(f"v_and_b32 {vr(V_T0)}, 31, {vr(V_LANE)}")
    a(f"v_lshrrev_b32 {vr(V_T1)}, 5, {vr(V_LANE)}")
    a(f"v_bfe_u32 {vr(V_T2)}, {vr(V_LANE)}, 1, 3")
    a(f"v_xor_b32 {vr(V_T2)}, {vr(V_T2)}, {vr(V_T1)}")
    a(f"v_lshlrev_b32 {vr(V_T2)}, 4, {vr(V_T2)}")
    a(f"v_lshl_add_u32 {vr(V_T2)}, {vr(V_T0)}, 7, {vr(V_T2)}")
    a(f"v_add_u32 {vr(XA)}, {sr(S_XS)}, {vr(V_T2)}")
    for s_ in range(1, 4):
        a(f"v_xor_b32 {vr(XA+s_)}, {s_<<5}, {vr(XA)}")
    a(f"v_and_b32 {vr(V_T2)}, 15, {vr(V_LANE)}")
    a(f"v_xor_b32 {vr(V_T3)}, {vr(V_T1)}, {vr(V_T2)}")
    a(f"v_lshlrev_b32 {vr(V_T3)}, 4, {vr(V_T3)}")
    a(f"v_lshl_add_u32 {vr(KA)}, {vr(V_T0)}, 8, {vr(V_T3)}")
    for s_ in range(1, 8):
        a(f"v_xor_b32 {vr(KA+s_)}, {s_<<5}, {vr(KA)}")
    a(f"v_lshrrev_b32 {vr(V_T3)}, 2, {vr(V_T2)}")
    a(f"v_bfe_u32 {vr(V_T4)}, {vr(V_LANE)}, 4, 1")
    VX0, VX1, VX2 = QF, QF+1, QF+2
    a(f"v_bfe_u32 {vr(VX0)}, {vr(V_LANE)}, 1, 1")
    a(f"v_lshl_add_u32 {vr(VX0)}, {vr(V_T4)}, 1, {vr(VX0)}")
    a(f"v_lshlrev_b32 {vr(VX0)}, 4, {vr(VX0)}")
    a(f"v_and_b32 {vr(VX1)}, 1, {vr(V_LANE)}")
    a(f"v_lshl_add_u32 {vr(VX0)}, {vr(VX1)}, 3, {vr(VX0)}")
    a(f"v_lshl_add_u32 {vr(VX0)}, {vr(V_T3)}, 6, {vr(VX0)}")
    a(f"v_lshl_add_u32 {vr(VX1)}, {vr(V_T1)}, 2, {vr(V_T3)}")
    a(f"v_lshl_add_u32 {vr(VX0)}, {vr(VX1)}, 8, {vr(VX0)}")
    a(f"v_add_u32 {vr(VA)}, 8192, {vr(VX0)}")
    for dt in range(1, 4):
        a(f"v_xor_b32 {vr(VA+dt)}, {dt<<6}, {vr(VA)}")
    a(f"v_and_b32 {vr(VX0)}, 1, {vr(V_LANE)}")
    a(f"v_lshl_add_u32 {vr(VX0)}, {vr(V_T4)}, 1, {vr(VX0)}")
    a(f"v_lshlrev_b32 {vr(VX0)}, 4, {vr(VX0)}")
    a(f"v_bfe_u32 {vr(VX1)}, {vr(V_LANE)}, 1, 1")
    a(f"v_lshl_add_u32 {vr(VX0)}, {vr(VX1)}, 3, {vr(VX0)}")
    a(f"v_lshl_add_u32 {vr(VX0)}, {vr(V_T3)}, 6, {vr(VX0)}")
    a(f"v_lshl_add_u32 {vr(VX1)}, {vr(V_T1)}, 3, {vr(V_T3)}")
    a(f"v_lshl_add_u32 {vr(VX2)}, {vr(VX1)}, 8, {vr(VX0)}")
    a(f"v_add_u32 {vr(WA)}, {WQ0}, {vr(VX2)}")
    for dt in range(1, 4):
        a(f"v_xor_b32 {vr(WA+dt)}, {dt<<6}, {vr(WA)}")
    for r in range(64):
        a(f"v_mov_b32 {vr(OA+r)}, 0")
    a(f"s_mov_b32 {sr(S_LAND)}, 0")
    stamp()
    a("s_barrier")
    stamp()

    def wait_landed(flag_off, need):
        Lok = a.new("lok"); Lp = a.new("lpoll")
        a(f"s_cmp_ge_u32 {sr(S_LAND)}, {need}")
        a(f"s_cbranch_scc1 {Lok}")
        a.label(Lp)
        a(f"ds_read_b32 {vr(V_FLAG)}, {vr(V_FLAGA)} offset:{flag_off-FLAGS}")
        a("s_waitcnt lgkmcnt(0)")
        a(f"v_readfirstlane_b32 {sr(S_LAND)}, {vr(V_FLAG)}")
        a(f"s_cmp_ge_u32 {sr(S_LAND)}, {need}")
        a(f"s_cbranch_scc1 {Lok}")
        a(f"s_sleep {opts.get('csleep', 1)}")
        a(f"s_branch {Lp}")
        a.label(Lok)
    def publish_done(val):
        a(f"v_mov_b32 {vr(V_T0)}, {val}")
        a("s_mov_b64 exec, 1")
        a(f"ds_write_b32 {vr(V_DONEA)}, {vr(V_T0)}")
        a("s_mov_b64 exec, -1")

    a.c("---- Q projection")
    AB = QF
    def qproj(nt):
        def reads_for(ks):
            n = 0
            c, ksp = ks >> 1, ks & 1
            if ks % 4 == 0:
                kc = ks >> 2
                a(f"s_waitcnt vmcnt({4*nt if kc < 7 else 0})")
                for s_ in range(4):
                    a(f"ds_read_b128 {vr(XF+16*(kc&1)+4*s_,4)}, {vr(XA+s_)} offset:{(kc&1)*4096}")
                n += 4
                if nt == 2:
                    if ksp == 0:
                        pass
            if ksp == 0:
                acc_begin()
                wait_landed(F_WQ, c+1)
                acc_end(88)
            for dt in range(4):
                for u in range(2):
                    a(f"ds_read_b64_tr_b16 {vr(AB+16*(ks&1)+4*dt+2*u,2)}, {vr(WA+dt)} offset:{(c%6)*8192+ksp*4096+u*1024}")
            n += 8
            if ksp == 1:
                publish_done(c+1)
                n += 1
            return n
        def xb_reads(kc):
            for s_ in range(4):
                a(f"ds_read_b128 {vr(XFB[kc&1]+4*s_,4)}, {vr(XA+s_)} offset:{8192+(kc&1)*4096}")
        if nt == 2:
            for r in range(64):
                a(f"v_mov_b32 {vr(OB2+r)}, 0")
        reads_for(0)
        if nt == 2: xb_reads(0)
        for ks in range(32):
            kc = ks >> 2
            if ks + 1 < 32:
                n = reads_for(ks+1)
                a(f"s_waitcnt lgkmcnt({n})")
            else:
                a("s_waitcnt lgkmcnt(0)")
            for dt in range(4):
                a(f"v_mfma_f32_32x32x16_bf16 {vr(OA+16*dt,16)}, {vr(AB+16*(ks&1)+4*dt,4)}, {vr(XF+16*(kc&1)+4*(ks&3),4)}, {vr(OA+16*dt,16)}")
            if nt == 2:
                if (ks + 1) % 4 == 0 and ks + 1 < 32:
                    xb_reads(kc + 1)
                for dt in range(4):
                    a(f"v_mfma_f32_32x32x16_bf16 {vr(OB2+16*dt,16)}, {vr(AB+16*(ks&1)+4*dt,4)}, {vr(XFB[kc&1]+4*(ks&3),4)}, {vr(OB2+16*dt,16)}")
            if ks % 4 == (1 if nt == 2 else 0) and kc + 2 < 8:
                x_dma(kc + 2, nt)
        a.nop(16)
        if nt == 2:
            for r in range(64):
                a(f"v_mul_f32 {vr(OB2+r)}, {sr(S_C)}, {vr(OB2+r)}")
            for k in range(32):
                a(f"v_cvt_pk_bf16_f32 {vr(XF+k)}, {vr(OB2+2*k)}, {vr(OB2+2*k+1)}")
            a(f"v_lshlrev_b32 {vr(V_T1)}, 4, {vr(V_LANE)}")
            a(f"v_add_u32 {vr(V_T1)}, {sr(S_XS)}, {vr(V_T1)}")
            for s_ in range(8):
                a(f"ds_write_b128 {vr(V_T1)}, {vr(XF+4*s_,4)} offset:{s_*1024}")
            a(f"s_lshl_b32 {sr(S_TMP)}, {sr(S_W)}, 2")
            a(f"s_add_u32 {sr(S_TMP)}, {sr(S_TMP)}, {F_QRDY}")
            a(f"v_mov_b32 {vr(V_T1)}, {sr(S_TMP)}")
            a(f"v_mov_b32 {vr(V_T0)}, 1")
            a("s_mov_b64 exec, 1")
            a(f"ds_write_b32 {vr(V_T1)}, {vr(V_T0)}")
            a("s_mov_b64 exec, -1")
        for r in range(64):
            a(f"v_mul_f32 {vr(OA+r)}, {sr(S_C)}, {vr(OA+r)}")
        for k in range(32):
            a(f"v_cvt_pk_bf16_f32 {vr(QF+k)}, {vr(OA+2*k)}, {vr(OA+2*k+1)}")
    if QP2:
        a(f"s_cmp_gt_u32 {sr(S_W)}, 3")
        a("s_cbranch_scc1 L1_qrecv")
        a(f"s_cmp_eq_u32 {sr(S_W)}, 3")
        a("s_cbranch_scc1 L1_q1")
        qproj(2)
        a("s_branch L1_qdone")
        a.label("L1_q1")
        qproj(1)
        a("s_branch L1_qdone")
        a.label("L1_qrecv")
        publish_done(15)
        a(f"s_and_b32 {sr(S_TMP)}, {sr(S_W)}, 3")
        a(f"s_lshl_b32 {sr(S_TMP)}, {sr(S_TMP)}, 2")
        a(f"s_add_u32 {sr(S_TMP)}, {sr(S_TMP)}, {F_QRDY}")
        a(f"v_mov_b32 {vr(V_T1)}, {sr(S_TMP)}")
        a.label("L1_qw")
        a(f"ds_read_b32 {vr(V_FLAG)}, {vr(V_T1)}")
        a("s_waitcnt lgkmcnt(0)")
        a(f"v_readfirstlane_b32 {sr(S_TMP)}, {vr(V_FLAG)}")
        a(f"s_cmp_ge_u32 {sr(S_TMP)}, 1")
        a("s_cbranch_scc1 L1_qok")
        a("s_sleep 4")
        a("s_branch L1_qw")
        a.label("L1_qok")
        a(f"v_lshlrev_b32 {vr(V_T1)}, 4, {vr(V_LANE)}")
        a(f"v_add_u32 {vr(V_T1)}, {sr(S_XS)}, {vr(V_T1)}")
        for s_ in range(8):
            a(f"ds_read_b128 {vr(QF+4*s_,4)}, {vr(V_T1)} offset:{s_*1024}")
        publish_done(16)
        a("s_waitcnt lgkmcnt(0)")
        a.label("L1_qdone")
    else:
        qproj(1)
    a(f"v_lshlrev_b32 {vr(V_STO)}, 4, {vr(V_LANE)}")
    for r in range(64):
        a(f"v_mov_b32 {vr(OA+r)}, 0")
    a(f"v_mov_b32 {vr(V_L0)}, 0")
    a(f"v_mov_b32 {vr(V_L1)}, 0")
    a(f"s_mov_b32 {sr(S_T)}, 0")
    a(f"s_mov_b32 {sr(S_LAND)}, 0")
    a(f"s_mov_b32 {sr(S_DONE)}, 17")

    FAKE = opts.get("fake", 0)
    def k_reads(j):
        for s_ in range(4 if FAKE & 1 else 8):
            a(f"ds_read_b128 {vr(KF+4*s_,4)}, {vr(KA+s_)} offset:{j*SLOT}")
    def max_tree_ops(S):
        T = TMP
        return [
            f"v_max3_f32 {vr(T)}, {vr(S)}, {vr(S+1)}, {vr(S+2)}",
            f"v_max3_f32 {vr(T+1)}, {vr(S+3)}, {vr(S+4)}, {vr(S+5)}",
            f"v_max3_f32 {vr(T+2)}, {vr(S+6)}, {vr(S+7)}, {vr(S+8)}",
            f"v_max3_f32 {vr(T+3)}, {vr(S+9)}, {vr(S+10)}, {vr(S+11)}",
            f"v_max3_f32 {vr(T+4)}, {vr(S+12)}, {vr(S+13)}, {vr(S+14)}",
            f"v_max3_f32 {vr(T)}, {vr(T)}, {vr(T+1)}, {vr(S+15)}",
            f"v_max3_f32 {vr(T+2)}, {vr(T+2)}, {vr(T+3)}, {vr(T+4)}",
            f"v_max_f32 {vr(V_MX)}, {vr(T)}, {vr(T+2)}"]
    def rescale(S, first):
        T = TMP
        a(f"v_mov_b32 {vr(T)}, {vr(V_MX)}")
        a.nop(2)
        a(f"v_permlane32_swap_b32 {vr(T)}, {vr(V_MX)}")
        a.nop(2)
        if first:
            a(f"v_max_f32 {vr(T)}, {vr(T)}, {vr(V_MX)}")
            a(f"v_sub_f32 {vr(T+1)}, 0, {vr(T)}")
        else:
            a(f"v_max3_f32 {vr(T)}, {vr(T)}, {vr(V_MX)}, 0")
            a(f"v_sub_f32 {vr(T+1)}, {vr(NM)}, {vr(T)}")
        for r in range(16):
            a(f"v_sub_f32 {vr(S+r)}, {vr(S+r)}, {vr(T)}")
        for r in range(16):
            a(f"v_mov_b32 {vr(NM+r)}, {vr(T+1)}")
        if not first:
            a(f"v_sub_f32 {vr(T+2)}, 0, {vr(T)}")
            a(f"v_exp_f32 {vr(T+2)}, {vr(T+2)}")
            a.nop(1)
            a(f"v_mul_f32 {vr(V_L0)}, {vr(V_L0)}, {vr(T+2)}")
            a(f"v_mul_f32 {vr(V_L1)}, {vr(V_L1)}, {vr(T+2)}")
            for r in range(64):
                a(f"v_mul_f32 {vr(OA+r)}, {vr(OA+r)}, {vr(T+2)}")
    stamp()
    wait_landed(F_KV, 1)
    stamp()
    k_reads(0)
    a("s_waitcnt lgkmcnt(0)")
    for s_ in range(8):
        srcC = "0" if s_ == 0 else vr(SB0,16)
        a(f"v_mfma_f32_32x32x16_bf16 {vr(SB0,16)}, {vr(KF+4*s_,4)}, {vr(QF+4*s_,4)}, {srcC}")
    wait_landed(F_KV, 2)
    k_reads(1)
    a.nop(12)
    for op in max_tree_ops(SB0): a(op)
    rescale(SB0, True)
    a.nop(2)

    rare_blocks = []
    def tile(j, has_next, has_next2, dyn):
        SBc, SBn = (SB0, SB1) if (j & 1) == 0 else (SB1, SB0)
        a.c(f"tile slot {j} next={has_next} next2={has_next2}")
        vreads = [(s2, dt, u) for s2 in range(2) for dt in range(4) for u in range(2)]
        if has_next:
            a("s_waitcnt lgkmcnt(0)")
        EARLYV = opts.get("earlyv", 0)
        for i in range(8):
            if has_next:
                srcC = NM if i == 0 else SBn
                a(f"v_mfma_f32_32x32x16_bf16 {vr(SBn,16)}, {vr(KF+4*i,4)}, {vr(QF+4*i,4)}, {vr(srcC,16)}")
            vr_here = (vreads[4*i:4*i+4] if i < 4 else []) if EARLYV else vreads[2*i:2*i+2]
            for (s2, dt, u) in vr_here:
                if (FAKE & 1) and dt >= 2: continue
                a(f"ds_read_b64_tr_b16 {vr(VF+16*s2+4*dt+2*u,2)}, {vr(VA+dt)} offset:{j*SLOT+s2*4096+u*2048}")
            if EARLYV and i == 4:
                if has_next2:
                    a(f"ds_read_b32 {vr(V_FLAG)}, {vr(V_FLAGA)} offset:{F_KV-FLAGS}")
                publish_done(sr(S_DONE))
            a(f"v_exp_f32 {vr(SBc+2*i)}, {vr(SBc+2*i)}")
            a(f"v_exp_f32 {vr(SBc+2*i+1)}, {vr(SBc+2*i+1)}")
            if i >= 1:
                k = i - 1
                a(f"v_cvt_pk_bf16_f32 {vr(PB+k)}, {vr(SBc+2*k)}, {vr(SBc+2*k+1)}")
                if opts.get("pkadd", 0):
                    a(f"v_pk_add_f32 {vr(V_L0,2)}, {vr(V_L0,2)}, {vr(SBc+2*k,2)}")
                elif not (FAKE & 2):
                    a(f"v_add_f32 {vr(V_L0)}, {vr(V_L0)}, {vr(SBc+2*k)}")
                    a(f"v_add_f32 {vr(V_L1)}, {vr(V_L1)}, {vr(SBc+2*k+1)}")
        if not EARLYV:
            if has_next2:
                a(f"ds_read_b32 {vr(V_FLAG)}, {vr(V_FLAGA)} offset:{F_KV-FLAGS}")
            if DYNP:
                a(f"ds_read_b32 {vr(V_T1)}, {vr(V_PARTA)}")
            publish_done(sr(S_DONE))
        else:
            a("s_nop 0")
        a(f"v_cvt_pk_bf16_f32 {vr(PB+7)}, {vr(SBc+14)}, {vr(SBc+15)}")
        a(f"v_add_f32 {vr(V_L0)}, {vr(V_L0)}, {vr(SBc+14)}")
        a(f"v_add_f32 {vr(V_L1)}, {vr(V_L1)}, {vr(SBc+15)}")
        a(f"s_add_u32 {sr(S_DONE)}, {sr(S_DONE)}, 1")
        if j == 3:
            for dt in range(4):
                a(f"v_xor_b32 {vr(VA+dt)}, 0x10000, {vr(VA+dt)}")
        if j == 2 and has_next2:
            for s_ in range(8):
                a(f"v_xor_b32 {vr(KA+s_)}, 0x10000, {vr(KA+s_)}")
        a("s_waitcnt lgkmcnt(0)")
        pv = [(s2, dt) for s2 in range(2) for dt in range(4)]
        def pvm(i):
            s2, dt = pv[i]
            a(f"v_mfma_f32_32x32x16_bf16 {vr(OA+16*dt,16)}, {vr(VF+16*s2+4*dt,4)}, {vr(PB+4*s2,4)}, {vr(OA+16*dt,16)}")
        pvm(0)
        if DYNP:
            Lhi = a.new("hi"); Lpd = a.new("pd")
            a(f"v_readfirstlane_b32 {sr(S_TMP2)}, {vr(V_T1)}")
            a(f"s_cmp_ge_u32 {sr(S_TMP2)}, {sr(S_DONE)}")
            a(f"s_cbranch_scc1 {Lhi}")
            a("s_setprio 0")
            a(f"s_branch {Lpd}")
            a.label(Lhi)
            a("s_setprio 1")
            a.label(Lpd)
        Lnp = a.new("nopref"); Lj = a.new("join")
        if has_next2:
            a(f"v_readfirstlane_b32 {sr(S_LAND)}, {vr(V_FLAG)}")
            a(f"s_add_u32 {sr(S_TMP)}, {sr(S_T)}, 3")
            a(f"s_mov_b32 {sr(S_PREF)}, 0")
            a(f"s_cmp_ge_u32 {sr(S_LAND)}, {sr(S_TMP)}")
            a(f"s_cbranch_scc0 {Lnp}")
            k_reads((j+2) & 3)
            a(f"s_mov_b32 {sr(S_PREF)}, 1")
            a.label(Lnp)
        pvm(1); pvm(2); pvm(3)
        mt = max_tree_ops(SBn) if has_next else []
        for i in range(4, 8):
            pvm(i)
            for op in mt[2*(i-4):2*(i-4)+2]: a(op)
        a(f"s_add_u32 {sr(S_T)}, {sr(S_T)}, 1")
        if has_next:
            Lrare = a.new("rare"); Lback = a.new("back")
            a(f"v_cmp_lt_f32 vcc, {sr(S_TH)}, {vr(V_MX)}")
            a(f"s_cbranch_vccnz {Lrare}")
            a.label(Lback)
            rare_blocks.append((Lrare, Lback, SBn))
        if has_next2:
            Lnext = a.new("next")
            a(f"s_cmp_eq_u32 {sr(S_PREF)}, 1")
            a(f"s_cbranch_scc1 {Lnext}")
            a(f"s_add_u32 {sr(S_TMP)}, {sr(S_T)}, 2")
            acc_begin()
            wait_landed(F_KV, sr(S_TMP))
            acc_end(89)
            k_reads((j+2) & 3)
            a.label(Lnext)
    a.c("---- attention loop")
    a.label("L1_loop")
    for j in range(4):
        tile(j, True, True, True)
    a(f"s_cmp_lt_u32 {sr(S_T)}, 28")
    a("s_cbranch_scc1 L1_loop")
    tile(0, True, True, False)
    tile(1, True, True, False)
    tile(2, True, False, False)
    tile(3, False, False, False)
    a.label("L1_epi")
    stamp()
    T = TMP
    a(f"v_add_f32 {vr(V_L0)}, {vr(V_L0)}, {vr(V_L1)}")
    a(f"v_mov_b32 {vr(T)}, {vr(V_L0)}")
    a.nop(2)
    a(f"v_permlane32_swap_b32 {vr(T)}, {vr(V_L0)}")
    a.nop(2)
    a(f"v_add_f32 {vr(T)}, {vr(T)}, {vr(V_L0)}")
    a(f"v_rcp_f32 {vr(T)}, {vr(T)}")
    a.nop(12)
    for r in range(64):
        a(f"v_mul_f32 {vr(OA+r)}, {vr(OA+r)}, {vr(T)}")
    for k in range(32):
        a(f"v_cvt_pk_bf16_f32 {vr(KF+k)}, {vr(OA+2*k)}, {vr(OA+2*k+1)}")
    for f in range(8):
        so = "0" if f < 4 else sr(S_SOFF)
        if f == 4:
            a(f"s_mov_b32 {sr(S_SOFF)}, 4096")
        a(f"buffer_store_dwordx4 {vr(KF+4*f,4)}, {vr(V_STO)}, {sr(R_O,4)}, {so} offen offset:{(f&3)*1024}{STF}")
    if PROF:
        a("s_waitcnt vmcnt(0)")
    stamp()
    if FUSED:
        a("s_waitcnt vmcnt(0)")
        if PROF:
            a("s_memrealtime s[90:91]"); a("s_waitcnt lgkmcnt(0)"); a("s_mov_b32 s88, s90")
        a(f"v_mov_b32 {vr(V_T0)}, 1")
        a("s_mov_b64 exec, 1")
        a(f"ds_add_u32 {vr(V_FLAGA)}, {vr(V_T0)} offset:{F_ODONE-FLAGS}")
        a("s_mov_b64 exec, -1")
        a("s_setprio 0")
        a("s_branch L_phaseB")
    else:
        prof_store()
        a("s_endpgm")
    cons_stamps = stamp_n[0]
    stamp_n[0] = 1
    for (Lrare, Lback, S) in rare_blocks:
        a.label(Lrare)
        a.nop(16)
        rescale(S, False)
        a(f"s_branch {Lback}")

    a.label("L1_producer")
    a("s_setprio 3")
    PV_K, PV_V, PV_WQ, PV_WO = 8, 12, 13, 14
    PV_DA, PV_D, PV_T0, PV_T1, PV_T2, PV_FA = 15, 16, 17, 18, 19, 20
    PV_TA = 21
    a(f"s_lshl_b32 {sr(S_TMP)}, {sr(S_H)}, 8")
    a(f"s_sub_u32 {sr(S_TMP2)}, 4194304, {sr(S_TMP)}")
    srd(R_WQ, S_WQ, sr(S_TMP), sr(S_TMP2))
    a(f"v_lshrrev_b32 {vr(PV_T0)}, 4, v2")
    a(f"v_and_b32 {vr(PV_T1)}, 15, v2")
    a(f"v_lshlrev_b32 {vr(PV_T2)}, 2, {vr(PV_T0)}")
    a(f"v_xor_b32 {vr(PV_T2)}, {vr(PV_T2)}, {vr(PV_T1)}")
    a(f"v_lshlrev_b32 {vr(PV_T2)}, 4, {vr(PV_T2)}")
    a(f"v_lshl_add_u32 {vr(PV_V)}, {vr(PV_T0)}, 8, {vr(PV_T2)}")
    a(f"v_lshl_add_u32 {vr(PV_WQ)}, {vr(PV_T0)}, 13, {vr(PV_T2)}")

    issued = []
    published = {"wq": 0, "kv": 0}
    landed_upto = [0]
    ntq = " nt" if opts.get("nt_wq") else ""
    def issue_wq(c):
        loc = wq_loc(c)
        for i in range(8):
            a(f"s_mov_b32 m0, {loc + i*1024}")
            a(f"s_mov_b32 {sr(S_SOFF)}, {(c*32 + 4*i)*8192}")
            a(f"buffer_load_dwordx4 {vr(PV_WQ)}, {sr(R_WQ,4)}, {sr(S_SOFF)} offen{ntq} lds")
        issued.append(("wq", c, 8))
    PV_X0, PV_X1, PV_X2 = 22, 23, 24
    if opts.get("earlybar", 0):
        a(f"v_lshlrev_b32 {vr(PV_X0)}, 2, v2")
        a(f"v_add_u32 {vr(PV_X0)}, {FLAGS}, {vr(PV_X0)}")
        a(f"v_mov_b32 {vr(PV_X1)}, 0")
        a(f"v_cmp_eq_u32 vcc, 15, v2")
        a(f"v_mov_b32 {vr(PV_X2)}, 0x7fffffff")
        a("s_nop 1")
        a(f"v_cndmask_b32 {vr(PV_X1)}, {vr(PV_X1)}, {vr(PV_X2)}, vcc")
        a("s_mov_b64 exec, 0xffff")
        a(f"ds_write_b32 {vr(PV_X0)}, {vr(PV_X1)}")
        a("s_mov_b64 exec, -1")
        a("s_waitcnt lgkmcnt(0)")
        a("s_barrier")

    stamp()
    for c in range(6):
        issue_wq(c)
    stamp()
    a(f"s_lshl_b32 {sr(S_TMP)}, s2, 18")
    srd(R_K, S_K, sr(S_TMP), 262144)
    srd(R_V, S_V, sr(S_TMP), 262144)
    a(f"s_lshl_b32 {sr(S_TMP)}, {sr(S_H)}, 17")
    a(f"s_lshl_b32 {sr(S_TMP2)}, {sr(S_B)}, 7")
    a(f"s_add_u32 {sr(S_TMP)}, {sr(S_TMP)}, {sr(S_TMP2)}")
    a(f"s_sub_u32 {sr(S_TMP2)}, 131072, {sr(S_TMP2)}")
    srd(R_WO, S_WO, sr(S_TMP), sr(S_TMP2))
    a(f"s_lshl_b32 {sr(S_TMP)}, {sr(S_B)}, 6")
    a(f"s_add_u32 {sr(S_TMP)}, {sr(S_TMP)}, {sr(S_H)}")
    a(f"s_lshl_b32 {sr(S_TMP)}, {sr(S_TMP)}, 13")
    a(f"s_add_u32 {sr(S_TMP)}, {sr(S_TMP)}, {WS_WOT}")
    srd(R_WT, S_WS, sr(S_TMP), 262144 + 8192)
    for i in range(4):
        a(f"v_add_u32 {vr(PV_T2)}, {4*i}, {vr(PV_T0)}")
        a(f"v_xor_b32 {vr(PV_T2)}, {vr(PV_T2)}, {vr(PV_T1)}")
        a(f"v_lshlrev_b32 {vr(PV_T2)}, 4, {vr(PV_T2)}")
        a(f"v_lshl_add_u32 {vr(PV_K+i)}, {vr(PV_T0)}, 8, {vr(PV_T2)}")
    a(f"v_lshrrev_b32 {vr(PV_T0)}, 3, v2")
    a(f"v_and_b32 {vr(PV_T1)}, 7, v2")
    a(f"v_lshlrev_b32 {vr(PV_T1)}, 4, {vr(PV_T1)}")
    a(f"v_lshl_add_u32 {vr(PV_WO)}, {vr(PV_T0)}, 10, {vr(PV_T1)}")
    a(f"v_and_b32 {vr(PV_T0)}, 7, v2")
    a(f"v_lshlrev_b32 {vr(PV_T0)}, 2, {vr(PV_T0)}")
    a(f"v_add_u32 {vr(PV_DA)}, {F_DONE}, {vr(PV_T0)}")
    a(f"v_mov_b32 {vr(PV_FA)}, {FLAGS}")
    a(f"v_lshrrev_b32 {vr(PV_T0)}, 5, v2")
    a(f"v_bfe_u32 {vr(PV_T1)}, v2, 2, 2")
    a(f"v_lshl_add_u32 {vr(PV_T0)}, {vr(PV_T0)}, 2, {vr(PV_T1)}")
    a(f"v_lshlrev_b32 {vr(PV_T0)}, 7, {vr(PV_T0)}")
    a(f"v_bfe_u32 {vr(PV_T1)}, v2, 4, 1")
    a(f"v_lshl_add_u32 {vr(PV_T0)}, {vr(PV_T1)}, 5, {vr(PV_T0)}")
    a(f"v_and_b32 {vr(PV_T1)}, 3, v2")
    a(f"v_lshl_add_u32 {vr(PV_T0)}, {vr(PV_T1)}, 3, {vr(PV_T0)}")
    a(f"v_add_u32 {vr(PV_TA)}, {WO_STAGE}, {vr(PV_T0)}")
    if not opts.get("earlybar", 0):
        a(f"v_lshlrev_b32 {vr(PV_X0)}, 2, v2")
        a(f"v_add_u32 {vr(PV_X0)}, {FLAGS}, {vr(PV_X0)}")
        a(f"v_mov_b32 {vr(PV_X1)}, 0")
        a(f"v_cmp_eq_u32 vcc, 15, v2")
        a(f"v_mov_b32 {vr(PV_X2)}, 0x7fffffff")
        a("s_nop 1")
        a(f"v_cndmask_b32 {vr(PV_X1)}, {vr(PV_X1)}, {vr(PV_X2)}, vcc")
        a("s_mov_b64 exec, 0xffff")
        a(f"ds_write_b32 {vr(PV_X0)}, {vr(PV_X1)}")
        a("s_mov_b64 exec, -1")
        a("s_waitcnt lgkmcnt(0)")
        a("s_barrier")


    def issue_kv(t):
        base = (t & 7) * SLOT
        for half in range(2):
            for q in range(2):
                a(f"s_mov_b32 m0, {base + half*8192 + q*4096}")
                a(f"s_mov_b32 {sr(S_SOFF)}, {t*8192 + q*4096}")
                for i in range(4):
                    vo = PV_K + i if half == 0 else PV_V
                    R = R_K if half == 0 else R_V
                    a(f"buffer_load_dwordx4 {vr(vo)}, {sr(R,4)}, {sr(S_SOFF)} offen offset:{i*1024} nt lds")
        issued.append(("kv", t, 16))
    def issue_wo():
        for i in range(16):
            a(f"s_mov_b32 m0, {WO_STAGE + i*1024}")
            a(f"s_mov_b32 {sr(S_SOFF)}, {i*8*1024}")
            a(f"buffer_load_dwordx4 {vr(PV_WO)}, {sr(R_WO,4)}, {sr(S_SOFF)} offen lds")
        issued.append(("wo", 0, 16))
    pending_wo = [False]
    extra_vm = []
    def settle(cap):
        tot = 0
        n = len(issued)
        k = n
        while k > landed_upto[0] and tot + issued[k-1][2] <= cap:
            tot += issued[k-1][2]; k -= 1
        if k <= landed_upto[0]:
            return
        a(f"s_waitcnt vmcnt({tot})")
        newwq, newkv = published["wq"], published["kv"]
        for g in issued[landed_upto[0]:k]:
            if g[0] == "wq": newwq = g[1] + 1
            if g[0] == "kv": newkv = g[1] + 1
            if g[0] == "wo": pending_wo[0] = True
            if g[0] == "st" and FUSED:
                a(f"v_mov_b32 {vr(PV_T0)}, s2")
                a(f"v_mov_b32 {vr(PV_T1)}, 1")
                a("s_mov_b64 exec, 1")
                a(f"global_store_byte {vr(PV_T0)}, {vr(PV_T1)}, s[{S_DBG}:{S_DBG+1}] sc1")
                a("s_mov_b64 exec, -1")
                extra_vm.append(1)
        landed_upto[0] = k
        while extra_vm:
            extra_vm.pop()
            issued.append(("at", 0, 1))
        if newwq != published["wq"] or newkv != published["kv"]:
            a("s_mov_b64 exec, 1")
            if newwq != published["wq"]:
                a(f"v_mov_b32 {vr(PV_T0)}, {newwq}")
                a(f"ds_write_b32 {vr(PV_FA)}, {vr(PV_T0)} offset:{F_WQ-FLAGS}")
                published["wq"] = newwq
            if newkv != published["kv"]:
                a(f"v_mov_b32 {vr(PV_T1)}, {newkv}")
                a(f"ds_write_b32 {vr(PV_FA)}, {vr(PV_T1)} offset:{F_KV-FLAGS}")
                published["kv"] = newkv
            a("s_mov_b64 exec, -1")
        if pending_wo[0]:
            pending_wo[0] = False
            do_wo_transpose()
    def settle_one():
        tot = sum(g[2] for g in issued[landed_upto[0]+1:])
        settle(tot)
    def do_wo_transpose():
        WB = 32
        for nt in range(2):
            for f in range(8):
                dt, u = f >> 1, f & 1
                for up in range(2):
                    off = (32*dt + 16*u + 8*up) * 128 + 64*nt
                    a(f"ds_read_b64_tr_b16 {vr(WB + (nt*8+f)*4 + 2*up, 2)}, {vr(PV_TA)} offset:{off}")
        a("s_waitcnt lgkmcnt(0)")
        a(f"v_lshlrev_b32 {vr(PV_T2)}, 4, v2")
        for nt in range(2):
            for f in range(8):
                a(f"s_mov_b32 {sr(S_SOFF)}, {nt*262144 + (f>>2)*4096}")
                a(f"buffer_store_dwordx4 {vr(WB + (nt*8+f)*4, 4)}, {vr(PV_T2)}, {sr(R_WT,4)}, {sr(S_SOFF)} offen offset:{(f&3)*1024}{STF}")
        issued.append(("st", 0, 16))
    def wait_done(need):
        def ok():
            if need <= 16: return published["wq"] >= need
            return published["wq"] == 16 and published["kv"] >= need - 16
        while not ok():
            settle_one()
        Lp = a.new("pw"); Lok = a.new("pok")
        acc_begin()
        a.label(Lp)
        a(f"ds_read_b32 {vr(PV_D)}, {vr(PV_DA)}")
        a("s_waitcnt lgkmcnt(0)")
        a(f"v_cmp_gt_u32 vcc, {need}, {vr(PV_D)}")
        a(f"s_cbranch_vccz {Lok}")
        a(f"s_sleep {opts.get('psleep', 2)}")
        a(f"s_branch {Lp}")
        a.label(Lok)
        acc_end(88)
    CAP = opts.get("cap", 32)
    order = opts.get("order", 0)
    if order == 0:
        for c in range(3):
            settle_one()
        issue_kv(0)
        for c in range(3):
            settle_one()
        kvn = 1
        kv_after = (7, 9)
    else:
        for c in range(6):
            settle_one()
        kvn = 0
        kv_after = [(9, 12, 15), (11, 13, 15), (13, 14, 15)][order-1]
    for c in range(6, 16):
        wait_done(c - 5)
        issue_wq(c)
        if c in kv_after:
            issue_kv(kvn); kvn += 1
        settle(24)
    for t in range(3, 32):
        need = 16 if t <= 7 else t + 9
        wait_done(need)
        issue_kv(t); settle(CAP)
        if t in (3, 8, 16, 24, 31): stamp()
        if t == 12:
            issue_wo(); settle(CAP)
    settle(16)
    settle(0)
    a("s_waitcnt vmcnt(0) lgkmcnt(0)")
    stamp()
    if not FUSED:
        prof_store()
        a.label("L1_done")
        a("s_endpgm")
        return
    S_QP, S_NP, S_CNT, S_B0, S_B1 = 47, 48, 49, 50, 51
    def job_calc():
        a(f"s_and_b32 {sr(S_TMP2)}, s2, 1")
        a(f"s_lshl_b32 {sr(S_TMP2)}, {sr(S_TMP2)}, 2")
        a(f"s_lshr_b32 {sr(S_TMP3)}, s2, 3")
        a(f"s_and_b32 {sr(S_NP)}, {sr(S_TMP3)}, 3")
        a(f"s_add_u32 {sr(S_NP)}, {sr(S_NP)}, {sr(S_TMP2)}")
        a(f"s_lshr_b32 {sr(S_TMP3)}, {sr(S_TMP3)}, 2")
        a(f"s_bfe_u32 {sr(S_TMP2)}, s2, 0x20001")
        a(f"s_mul_i32 {sr(S_TMP2)}, {sr(S_TMP2)}, 7")
        a(f"s_add_u32 {sr(S_QP)}, {sr(S_TMP2)}, {sr(S_TMP3)}")
    def gpoll(mask):
        Lp = a.new("gp"); Lok = a.new("gok")
        a(f"s_mov_b32 {sr(S_CNT)}, 0")
        a(f"s_mov_b32 {sr(S_TMP3)}, 0x{mask:08x}")
        a.label(Lp)
        a(f"global_load_dword {vr(PV_T1)}, {vr(PV_T0)}, s[{S_DBG}:{S_DBG+1}] sc1")
        a("s_waitcnt vmcnt(0)")
        a(f"v_and_b32 {vr(PV_T1)}, {sr(S_TMP3)}, {vr(PV_T1)}")
        a(f"v_cmp_ne_u32 vcc, {sr(S_TMP3)}, {vr(PV_T1)}")
        a(f"s_cbranch_vccz {Lok}")
        a(f"s_add_u32 {sr(S_CNT)}, {sr(S_CNT)}, 1")
        a(f"s_cmp_gt_u32 {sr(S_CNT)}, 0x40000")
        a(f"s_cbranch_scc1 {Lok}")
        a(f"s_sleep {opts.get('gsleep', 16)}")
        a(f"s_branch {Lp}")
        a.label(Lok)
    def set_flag(off):
        a(f"v_mov_b32 {vr(PV_T1)}, 1")
        a("s_mov_b64 exec, 1")
        a(f"ds_write_b32 {vr(PV_FA)}, {vr(PV_T1)} offset:{off-FLAGS}")
        a("s_mov_b64 exec, -1")
    job_calc()
    Lnojob0 = a.new("nojob0")
    a(f"s_cmp_ge_u32 s2, 224")
    a(f"s_cbranch_scc1 {Lnojob0}")
    a(f"v_lshlrev_b32 {vr(PV_T0)}, 2, v2")
    gpoll(0x01010101)
    a("buffer_inv sc1")
    a("s_waitcnt vmcnt(0)")
    set_flag(F_WOOK)
    a.label(Lnojob0)
    Lp = a.new("od"); Lok = a.new("odok")
    a.label(Lp)
    a(f"ds_read_b32 {vr(PV_D)}, {vr(PV_FA)} offset:{F_ODONE-FLAGS}")
    a("s_waitcnt lgkmcnt(0)")
    a(f"v_readfirstlane_b32 {sr(S_TMP2)}, {vr(PV_D)}")
    a(f"s_cmp_ge_u32 {sr(S_TMP2)}, 7")
    a(f"s_cbranch_scc1 {Lok}")
    a("s_sleep 1")
    a(f"s_branch {Lp}")
    a.label(Lok)
    a(f"v_mov_b32 {vr(PV_T0)}, s2")
    if PROF:
        a("s_memrealtime s[90:91]"); a("s_waitcnt lgkmcnt(0)"); a("s_mov_b32 s88, s90")
    a(f"v_mov_b32 {vr(PV_T1)}, 3")
    a("s_mov_b64 exec, 1")
    a(f"global_store_byte {vr(PV_T0)}, {vr(PV_T1)}, s[{S_DBG}:{S_DBG+1}] sc1")
    a("s_mov_b64 exec, -1")
    a(f"s_cmp_ge_u32 s2, 224")
    a("s_cbranch_scc1 L1_done")
    a(f"s_lshl_b32 {sr(S_TMP2)}, {sr(S_QP)}, 1")
    a(f"s_mul_i32 {sr(S_B0)}, {sr(S_TMP2)}, 37")
    a(f"s_lshr_b32 {sr(S_B0)}, {sr(S_B0)}, 8")
    a(f"s_lshl_b32 {sr(S_B0)}, {sr(S_B0)}, 5")
    a(f"s_add_u32 {sr(S_TMP2)}, {sr(S_TMP2)}, 1")
    a(f"s_mul_i32 {sr(S_B1)}, {sr(S_TMP2)}, 37")
    a(f"s_lshr_b32 {sr(S_B1)}, {sr(S_B1)}, 8")
    a(f"s_lshl_b32 {sr(S_B1)}, {sr(S_B1)}, 5")
    a(f"v_and_b32 {vr(PV_T0)}, 7, v2")
    a(f"v_lshlrev_b32 {vr(PV_T0)}, 2, {vr(PV_T0)}")
    a(f"v_mov_b32 {vr(PV_T1)}, {sr(S_B0)}")
    a(f"v_mov_b32 {vr(PV_T2)}, {sr(S_B1)}")
    a(f"v_and_b32 {vr(PV_D)}, 8, v2")
    a(f"v_cmp_ne_u32 vcc, 0, {vr(PV_D)}")
    a("s_nop 1")
    a(f"v_cndmask_b32 {vr(PV_T1)}, {vr(PV_T1)}, {vr(PV_T2)}, vcc")
    a(f"v_add_u32 {vr(PV_T0)}, {vr(PV_T0)}, {vr(PV_T1)}")
    gpoll(0x02020202)
    a("buffer_inv sc1")
    a("s_waitcnt vmcnt(0)")
    set_flag(F_GO)
    a("s_setprio 0")
    a(f"v_mov_b32 {vr(V_FLAGA)}, {FLAGS}")
    stamp_n[0] = cons_stamps
    a.label("L_phaseB")
    a(f"s_cmp_ge_u32 s2, 224")
    a("s_cbranch_scc1 L1_done")
    job_calc()
    R_O2, R_W2, R_OUT = 16, 20, 24
    S_SO = S_SOFF
    a(f"s_lshl_b32 {sr(S_TMP2)}, {sr(S_QP)}, 19")
    srd(R_O2, S_WS, sr(S_TMP2), 524288)
    a(f"s_lshl_b32 {sr(S_TMP2)}, {sr(S_NP)}, 19")
    a(f"s_add_u32 {sr(S_TMP2)}, {sr(S_TMP2)}, {WS_WOT}")
    srd(R_W2, S_WS, sr(S_TMP2), 524288)
    a(f"s_lshl_b32 {sr(S_TMP2)}, {sr(S_QP)}, 16")
    a(f"s_lshl_b32 {sr(S_TMP3)}, {sr(S_NP)}, 7")
    a(f"s_add_u32 {sr(S_TMP2)}, {sr(S_TMP2)}, {sr(S_TMP3)}")
    a(f"s_sub_u32 {sr(S_TMP3)}, 65536, {sr(S_TMP3)}")
    srd(R_OUT, S_OUTP, sr(S_TMP2), sr(S_TMP3))
    B_LO, B_HI, B_A = 5, 6, 7
    a(f"s_lshl_b32 {sr(S_TMP2)}, {sr(S_W)}, 15")
    a(f"v_lshlrev_b32 {vr(B_A)}, 4, v2")
    a(f"v_add_u32 {vr(B_LO)}, {sr(S_TMP2)}, {vr(B_A)}")
    a(f"v_add_u32 {vr(B_HI)}, 0x40000, {vr(B_LO)}")
    PW, PO = opts.get("pw", 14), opts.get("po", 8)
    ACC, WB = 16, 80
    OB = WB + 8*PW
    assert OB + 8*PO <= 256
    def lwait(off):
        Lp = a.new("lw"); Lok = a.new("lwok")
        a.label(Lp)
        a(f"ds_read_b32 {vr(V_FLAG)}, {vr(V_FLAGA)} offset:{off-FLAGS}")
        a("s_waitcnt lgkmcnt(0)")
        a(f"v_readfirstlane_b32 {sr(S_TMP2)}, {vr(V_FLAG)}")
        a(f"s_cmp_ge_u32 {sr(S_TMP2)}, 1")
        a(f"s_cbranch_scc1 {Lok}")
        a("s_sleep 1")
        a(f"s_branch {Lp}")
        a.label(Lok)
    seq = []
    def ld(kind, ks):
        base = (WB + 8*(ks % PW)) if kind == "w" else (OB + 8*(ks % PO))
        R = R_W2 if kind == "w" else R_O2
        a(f"s_mov_b32 {sr(S_SO)}, {(ks>>2)*4096}")
        o = (ks & 3) * 1024
        a(f"buffer_load_dwordx4 {vr(base,4)}, {vr(B_LO)}, {sr(R,4)}, {sr(S_SO)} offen offset:{o}")
        a(f"buffer_load_dwordx4 {vr(base+4,4)}, {vr(B_HI)}, {sr(R,4)}, {sr(S_SO)} offen offset:{o}")
        seq.append((kind, ks))
    lwait(F_WOOK)
    for ks in range(PW): ld("w", ks)
    for r in range(64):
        a(f"v_mov_b32 {vr(ACC+r)}, 0")
    stamp()
    lwait(F_GO)
    stamp()
    if PROF:
        a("s_memrealtime s[90:91]"); a("s_waitcnt lgkmcnt(0)"); a("s_mov_b32 s89, s90")
    for ks in range(PO): ld("o", ks)
    for ks in range(32):
        idx = max(seq.index(("w", ks)), seq.index(("o", ks)))
        a(f"s_waitcnt vmcnt({2*(len(seq)-1-idx)})")
        wb = WB + 8*(ks % PW); ob = OB + 8*(ks % PO)
        for qi in range(2):
            for ni in range(2):
                t = qi*2 + ni
                a(f"v_mfma_f32_32x32x16_bf16 {vr(ACC+16*t,16)}, {vr(wb+4*ni,4)}, {vr(ob+4*qi,4)}, {vr(ACC+16*t,16)}")
        if ks + PO < 32: ld("o", ks + PO)
        if ks + PW < 32: ld("w", ks + PW)
    a.nop(16)
    a(f"s_lshl_b32 {sr(S_TMP2)}, {sr(S_W)}, 14")
    a(f"v_add_u32 v8, {sr(S_TMP2)}, {vr(B_A)}")
    for t in range(4):
        for rq in range(4):
            a(f"ds_write_b128 v8, {vr(ACC+16*t+4*rq,4)} offset:{t*4096+rq*1024}")
    a("s_waitcnt lgkmcnt(0)")
    a("s_barrier")
    a(f"s_lshl_b32 {sr(S_TMP2)}, {sr(S_W)}, 11")
    a(f"v_add_u32 v8, {sr(S_TMP2)}, {vr(B_A)}")
    a(f"v_add_u32 v9, 0x10000, v8")
    RB = 80
    for w in range(8):
        for e in range(2):
            va = 8 if w < 4 else 9
            a(f"ds_read_b128 {vr(RB + (w*2+e)*4, 4)}, v{va} offset:{(w&3)*16384 + e*1024}")
    a("s_waitcnt lgkmcnt(0)")
    for e in range(2):
        for r in range(4):
            for w in range(1, 8):
                a(f"v_add_f32 {vr(RB+e*4+r)}, {vr(RB+e*4+r)}, {vr(RB+(w*2+e)*4+r)}")
    for e in range(2):
        a(f"v_cvt_pk_bf16_f32 {vr(16+2*e)}, {vr(RB+e*4)}, {vr(RB+e*4+1)}")
        a(f"v_cvt_pk_bf16_f32 {vr(17+2*e)}, {vr(RB+e*4+2)}, {vr(RB+e*4+3)}")
    a(f"s_lshr_b32 {sr(S_TMP2)}, {sr(S_W)}, 2")
    a(f"s_lshl_b32 {sr(S_TMP2)}, {sr(S_TMP2)}, 15")
    a(f"s_and_b32 {sr(S_TMP3)}, {sr(S_W)}, 3")
    a(f"s_lshl_b32 {sr(S_TMP3)}, {sr(S_TMP3)}, 5")
    a(f"s_add_u32 {sr(S_TMP2)}, {sr(S_TMP2)}, {sr(S_TMP3)}")
    a("v_and_b32 v8, 31, v2")
    a("v_lshlrev_b32 v8, 10, v8")
    a("v_lshrrev_b32 v9, 5, v2")
    a("v_lshl_add_u32 v8, v9, 3, v8")
    a(f"v_add_u32 v8, {sr(S_TMP2)}, v8")
    a(f"buffer_store_dwordx2 v[16:17], v8, {sr(R_OUT,4)}, 0 offen")
    a(f"buffer_store_dwordx2 v[18:19], v8, {sr(R_OUT,4)}, 0 offen offset:16")
    if PROF:
        a("s_waitcnt vmcnt(0)")
        stamp()
        prof_store()
    a.label("L1_done")
    a("s_endpgm")

def gen_k2(a, opts):
    S_WS, S_OUT = 4, 6
    R_O, R_W, R_OUT = 8, 12, 16
    S_W, S_QP, S_NP, S_T, S_T2, S_SO = 20, 21, 22, 23, 24, 25
    a.label(K2)
    a("s_cmp_ge_u32 s2, 224")
    a("s_cbranch_scc1 L2_done")
    a("s_load_dwordx2 s[4:5], s[0:1], 56")
    a("s_load_dwordx2 s[6:7], s[0:1], 40")
    a("v_lshrrev_b32 v1, 6, v0")
    a("v_and_b32 v2, 63, v0")
    a(f"v_readfirstlane_b32 {sr(S_W)}, v1")
    a(f"s_and_b32 {sr(S_T)}, s2, 1")
    a(f"s_lshl_b32 {sr(S_T)}, {sr(S_T)}, 2")
    a(f"s_lshr_b32 {sr(S_T2)}, s2, 3")
    a(f"s_and_b32 {sr(S_NP)}, {sr(S_T2)}, 3")
    a(f"s_add_u32 {sr(S_NP)}, {sr(S_NP)}, {sr(S_T)}")
    a(f"s_lshr_b32 {sr(S_T2)}, {sr(S_T2)}, 2")
    a(f"s_bfe_u32 {sr(S_T)}, s2, 0x20001")
    a(f"s_mul_i32 {sr(S_T)}, {sr(S_T)}, 7")
    a(f"s_add_u32 {sr(S_QP)}, {sr(S_T)}, {sr(S_T2)}")
    a("s_waitcnt lgkmcnt(0)")
    def srd(R, P, off_sreg, nrec):
        a(f"s_add_u32 {sr(R)}, {sr(P)}, {off_sreg}")
        a(f"s_addc_u32 {sr(R+1)}, {sr(P+1)}, 0")
        a(f"s_and_b32 {sr(R+1)}, {sr(R+1)}, 0xffff")
        a(f"s_mov_b32 {sr(R+2)}, {nrec}")
        a(f"s_mov_b32 {sr(R+3)}, 0x00020000")
    a(f"s_lshl_b32 {sr(S_T)}, {sr(S_QP)}, 19")
    srd(R_O, S_WS, sr(S_T), 524288)
    a(f"s_lshl_b32 {sr(S_T)}, {sr(S_NP)}, 19")
    a(f"s_add_u32 {sr(S_T)}, {sr(S_T)}, {WS_WOT}")
    srd(R_W, S_WS, sr(S_T), 524288)
    a(f"s_lshl_b32 {sr(S_T)}, {sr(S_QP)}, 16")
    a(f"s_lshl_b32 {sr(S_T2)}, {sr(S_NP)}, 7")
    a(f"s_add_u32 {sr(S_T)}, {sr(S_T)}, {sr(S_T2)}")
    a(f"s_sub_u32 {sr(S_T2)}, 65536, {sr(S_T2)}")
    srd(R_OUT, S_OUT, sr(S_T), sr(S_T2))
    V_LO, V_HI = 3, 4
    KIL = opts.get("kil", 0)
    a(f"s_lshl_b32 {sr(S_T)}, {sr(S_W)}, {10 if KIL else 15}")
    a(f"v_lshlrev_b32 {vr(V_LO)}, 4, v2")
    a(f"v_add_u32 {vr(V_LO)}, {sr(S_T)}, {vr(V_LO)}")
    a(f"v_add_u32 {vr(V_HI)}, 0x40000, {vr(V_LO)}")
    PROF = opts.get("prof", 0)
    pst = [0]
    def stamp2():
        if not PROF: return
        k = pst[0]; pst[0] += 1
        a(f"s_memrealtime s[{40+2*k}:{41+2*k}]")
    stamp2()
    PD = opts.get("pd", 8)
    ACC = 16
    BUF = 80
    ROT = opts.get("rot", 0)
    S_ROT = 26
    if ROT:
        a(f"s_lshr_b32 {sr(S_ROT)}, s2, 3")
        a(f"s_add_u32 {sr(S_ROT)}, {sr(S_ROT)}, {sr(S_W)}")
    def loads(ks):
        b = BUF + (ks % PD) * 16
        if ROT:
            a(f"s_add_u32 {sr(S_SO)}, {sr(S_ROT)}, {ks>>2}")
            a(f"s_and_b32 {sr(S_SO)}, {sr(S_SO)}, 7")
            a(f"s_lshl_b32 {sr(S_SO)}, {sr(S_SO)}, 12")
        elif KIL:
            a(f"s_mov_b32 {sr(S_SO)}, {ks*8192}")
        else:
            a(f"s_mov_b32 {sr(S_SO)}, {(ks>>2)*4096}")
        o = 0 if KIL else (ks & 3) * 1024
        a(f"buffer_load_dwordx4 {vr(b,4)}, {vr(V_LO)}, {sr(R_W,4)}, {sr(S_SO)} offen offset:{o}")
        a(f"buffer_load_dwordx4 {vr(b+4,4)}, {vr(V_HI)}, {sr(R_W,4)}, {sr(S_SO)} offen offset:{o}")
        a(f"buffer_load_dwordx4 {vr(b+8,4)}, {vr(V_LO)}, {sr(R_O,4)}, {sr(S_SO)} offen offset:{o}")
        a(f"buffer_load_dwordx4 {vr(b+12,4)}, {vr(V_HI)}, {sr(R_O,4)}, {sr(S_SO)} offen offset:{o}")
    for ks in range(PD):
        loads(ks)
    for r in range(64):
        a(f"v_mov_b32 {vr(ACC+r)}, 0")
    for ks in range(32):
        rem = min(PD - 1, 31 - ks)
        a(f"s_waitcnt vmcnt({4*rem})")
        if ks in (0, 8, 16, 24): stamp2()
        b = BUF + (ks % PD) * 16
        for qi in range(2):
            for ni in range(2):
                t = qi*2 + ni
                a(f"v_mfma_f32_32x32x16_bf16 {vr(ACC+16*t,16)}, {vr(b+4*ni,4)}, {vr(b+8+4*qi,4)}, {vr(ACC+16*t,16)}")
        if ks + PD < 32:
            loads(ks + PD)
    a.nop(16)
    stamp2()
    V_A = 5
    a(f"s_lshl_b32 {sr(S_T)}, {sr(S_W)}, 14")
    a(f"v_lshlrev_b32 {vr(V_A)}, 4, v2")
    a(f"v_add_u32 {vr(6)}, {sr(S_T)}, {vr(V_A)}")
    for t in range(4):
        for rq in range(4):
            a(f"ds_write_b128 v6, {vr(ACC+16*t+4*rq,4)} offset:{t*4096+rq*1024}")
    a("s_waitcnt lgkmcnt(0)")
    a("s_barrier")
    a(f"s_lshl_b32 {sr(S_T)}, {sr(S_W)}, 11")
    a(f"v_add_u32 {vr(6)}, {sr(S_T)}, {vr(V_A)}")
    a(f"v_add_u32 {vr(7)}, 0x10000, {vr(6)}")
    RB = 80
    for w in range(8):
        for e in range(2):
            va = 6 if w < 4 else 7
            a(f"ds_read_b128 {vr(RB + (w*2+e)*4, 4)}, v{va} offset:{(w&3)*16384 + e*1024}")
    a("s_waitcnt lgkmcnt(0)")
    for e in range(2):
        for r in range(4):
            for w in range(1, 8):
                a(f"v_add_f32 {vr(RB+e*4+r)}, {vr(RB+e*4+r)}, {vr(RB+(w*2+e)*4+r)}")
    for e in range(2):
        a(f"v_cvt_pk_bf16_f32 {vr(16+2*e)}, {vr(RB+e*4)}, {vr(RB+e*4+1)}")
        a(f"v_cvt_pk_bf16_f32 {vr(17+2*e)}, {vr(RB+e*4+2)}, {vr(RB+e*4+3)}")
    a(f"s_lshr_b32 {sr(S_T)}, {sr(S_W)}, 2")
    a(f"s_lshl_b32 {sr(S_T)}, {sr(S_T)}, 15")
    a(f"s_and_b32 {sr(S_T2)}, {sr(S_W)}, 3")
    a(f"s_lshl_b32 {sr(S_T2)}, {sr(S_T2)}, 5")
    a(f"s_add_u32 {sr(S_T)}, {sr(S_T)}, {sr(S_T2)}")
    a("v_and_b32 v8, 31, v2")
    a("v_lshlrev_b32 v8, 10, v8")
    a("v_lshrrev_b32 v9, 5, v2")
    a("v_lshl_add_u32 v8, v9, 3, v8")
    a(f"v_add_u32 v8, {sr(S_T)}, v8")
    a(f"buffer_store_dwordx2 v[16:17], v8, {sr(R_OUT,4)}, 0 offen")
    a(f"buffer_store_dwordx2 v[18:19], v8, {sr(R_OUT,4)}, 0 offen offset:16")
    if PROF:
        a("s_waitcnt vmcnt(0)")
        stamp2()
        a("s_waitcnt lgkmcnt(0)")
        a(f"s_lshl_b32 {sr(S_T)}, s2, 3"); a(f"s_add_u32 {sr(S_T)}, {sr(S_T)}, {sr(S_W)}"); a(f"s_lshl_b32 {sr(S_T)}, {sr(S_T)}, 6")
        a(f"s_add_u32 {sr(S_T)}, {sr(S_T)}, {40<<20}")
        srd(28, S_WS, sr(S_T), 64)
        a("v_mov_b32 v1, 0")
        for k in range(pst[0]):
            a(f"v_mov_b32 v0, s{40+2*k}")
            a(f"buffer_store_dword v0, v1, s[28:31], 0 offen offset:{4*k}")
    a.label("L2_done")
    a("s_endpgm")

HEADER = open("standalone__mha_block_cached__near_ridge.s.ref").read().split("; Override launch")[0]

def desc(name, vgpr, sgpr):
    return f""".amdhsa_kernel {name}
  .amdhsa_next_free_vgpr {vgpr}
  .amdhsa_next_free_sgpr {sgpr}
  .amdhsa_accum_offset {(vgpr+3)//4*4}
  .amdhsa_group_segment_fixed_size 0
  .amdhsa_kernarg_size 64
  .amdhsa_user_sgpr_count 2
  .amdhsa_user_sgpr_kernarg_segment_ptr 1
  .amdhsa_system_sgpr_workgroup_id_x 1
.end_amdhsa_kernel
"""

def build(opts):
    out = HEADER
    if opts.get("fused", 0):
        out += f"; @launch grid=(256,1,1) block=(512,1,1) lds={LDS1}\n"
        out += '.amdgcn_target "amdgcn-amd-amdhsa--gfx950"\n.text\n'
        a = Asm()
        out += f".globl {K2}\n.p2align 8\n.type {K2},@function\n"
        gen_k1(a, opts)
        out += a.text()
        out += '.section .rodata,"a"\n.p2align 6\n'
        out += desc(K2, 256, 102 if opts.get("prof") else 64)
        return out
    only = opts.get("only", 0)
    if only != 2:
        out += f"; @launch kernel={K1} grid=(256,1,1) block=(512,1,1) lds={LDS1}\n"
    if only != 1:
        out += f"; @launch kernel={K2} grid=(224,1,1) block=(512,1,1) lds=131072\n"
    out += '.amdgcn_target "amdgcn-amd-amdhsa--gfx950"\n.text\n'
    a = Asm()
    out += f".globl {K1}\n.p2align 8\n.type {K1},@function\n"
    gen_k1(a, opts)
    out += a.text()
    a2 = Asm(); a2.uid = 100000
    out += f".globl {K2}\n.p2align 8\n.type {K2},@function\n"
    gen_k2(a2, opts)
    out += a2.text()
    out += '.section .rodata,"a"\n.p2align 6\n'
    out += desc(K1, 256, 102 if opts.get("prof") else 64)
    out += ".p2align 6\n"
    out += desc(K2, 80 + 16*opts.get("pd", 8), 64 if opts.get("prof") else 32)
    return out

if __name__ == "__main__":
    opts = {}
    path = "standalone__mha_block_cached__near_ridge.s"
    for arg in sys.argv[1:]:
        if arg.startswith("-o"):
            path = arg[2:]
        else:
            k, v = arg.split("=")
            opts[k] = int(v)
    open(path, "w").write(build(opts))
    print("wrote", path)
```
